```python
import torch

def _softmax(x, axis=-1):
    return torch.softmax(x, dim=axis)
def _gelu(x):
    return torch.nn.functional.gelu(x, approximate="tanh")
def _silu(x):
    return torch.nn.functional.silu(x)
def _sigmoid(x):
    return torch.sigmoid(x)
def _layernorm(x, axis=-1, eps=1e-5):
    m = x.mean(dim=axis, keepdim=True)
    v = x.var(dim=axis, keepdim=True, unbiased=False)
    return (x - m) / torch.sqrt(v + eps)
def _scatter_add(tgt, idx, src, axis=0):
    return tgt.clone().index_add_(axis, idx, src)
def _segment_sum(src, seg, n):
    out = torch.zeros((n,) + src.shape[1:], dtype=src.dtype)
    return out.index_add_(0, seg, src)
def _pad(x, pw):
    flat = tuple(v for pair in reversed(pw) for v in pair)
    return torch.nn.functional.pad(x, flat)

kernel_name = 'gated_mix__sliding_block__mha_block__prompt'

def setup_inputs():

    _w = (lambda a: (lambda t: t.to(torch.bfloat16) if t.is_floating_point() else t)(torch.as_tensor(a)))
    def _A_setup():
        B, S, D = 1, 2048, 1024
        return {
            "x": _w((lambda *s: torch.randn(*s, dtype=torch.bfloat16) * 0.05)(B, S, D)),
            "wqkv": _w((lambda *s: torch.randn(*s, dtype=torch.bfloat16) * 0.8)(D, 3 * D)),
            "wo": _w((lambda *s: torch.randn(*s, dtype=torch.bfloat16) * 0.05)(D, D)),
        }
    _A_in = _A_setup()

    def _B_setup():
        B, S, D, H = 1, 2048, 1024, 32
        return {
            "x": _w((lambda *s: torch.randn(*s, dtype=torch.bfloat16) * 0.05)(B, S, D)),
            "wqkv": _w((lambda *s: torch.randn(*s, dtype=torch.bfloat16) * 0.8)(D, 3 * D)),
            "wo": _w((lambda *s: torch.randn(*s, dtype=torch.bfloat16) * 0.1)(D, D)),
        }
    _B_in = _B_setup()

    return {
        "A_x": _A_in["x"],
        "A_wqkv": _A_in["wqkv"],
        "A_wo": _A_in["wo"],
        "B_x": _B_in["x"],
        "B_wqkv": _B_in["wqkv"],
        "B_wo": _B_in["wo"],
        "gate_w": _w((lambda *s: torch.randn(*s, dtype=torch.bfloat16) * 0.05)(1024) * 16.0),
    }

def reference(A_x, A_wqkv, A_wo, B_x, B_wqkv, B_wo, gate_w):
    def _A_ref(x, wqkv, wo):
        B, S, D = x.shape
        H = 32; Dh = D // H; W = 256
        qkv = (lambda x, *d: x.permute(*d))((x @ wqkv).reshape(B, S, 3, H, Dh), 2, 0, 3, 1, 4)
        q, k, v = qkv[0], qkv[1], qkv[2]
        scores = torch.einsum("bhqd,bhkd->bhqk", q, k) * (Dh ** -0.5)
        idx = torch.arange(S)
        mask = (idx[:, None] - idx[None, :] >= 0) & (idx[:, None] - idx[None, :] < W)
        scores = torch.where(mask[None, None], scores, -1e9)
        p = _softmax(scores, axis=-1)
        o = torch.einsum("bhqk,bhkd->bhqd", p, v)
        return (lambda x, *d: x.permute(*d))(o, 0, 2, 1, 3).reshape(B, S, D) @ wo

    def _B_ref(x, wqkv, wo):
        B, S, D = x.shape
        H = 32
        Dh = D // H
        qkv = (lambda x, *d: x.permute(*d))((x @ wqkv).reshape(B, S, 3, H, Dh), 2, 0, 3, 1, 4)
        q, k, v = qkv[0], qkv[1], qkv[2]
        scores = torch.einsum("bhqd,bhkd->bhqk", q, k) * (Dh ** -0.5)
        p = _softmax(scores, axis=-1)
        o = torch.einsum("bhqk,bhkd->bhqd", p, v)
        return (lambda x, *d: x.permute(*d))(o, 0, 2, 1, 3).reshape(B, S, D) @ wo

    x = A_x
    g = _sigmoid((x * gate_w).sum(-1, keepdims=True))
    a = _A_ref(x, A_wqkv, A_wo)
    b = _B_ref(x, B_wqkv, B_wo)
    return g * a + (1 - g) * b
```

```python
class Asm:
    def __init__(self):
        self.lines = []
    def __call__(self, s):
        for ln in s.strip("\n").split("\n"):
            self.lines.append("    " + ln.strip() if not ln.strip().endswith(":") and not ln.strip().startswith(".") else ln.strip())
    def c(self, s):
        self.lines.append("    ; " + s)
    def label(self, s):
        self.lines.append(s + ":")
    def text(self):
        return "\n".join(self.lines) + "\n"

def v(r, n=1):
    return f"v{r}" if n == 1 else f"v[{r}:{r+n-1}]"
def a(r, n=1):
    return f"a{r}" if n == 1 else f"a[{r}:{r+n-1}]"
def s(r, n=1):
    return f"s{r}" if n == 1 else f"s[{r}:{r+n-1}]"

class RegAlloc:
    def __init__(self, start=0, limit=256):
        self.next = start; self.limit = limit; self.names = {}
    def alloc(self, name, n=1, align=None):
        if align is None:
            align = 1 if n == 1 else (2 if n == 2 else 4)
        r = (self.next + align - 1) // align * align
        self.next = r + n
        assert self.next <= self.limit, f"out of regs at {name}"
        self.names[name] = r
        return r

def interleave(primary, secondary, start=0, per=1):
    out = []
    sec = list(secondary)
    for i, p in enumerate(primary):
        out.append(p)
        if i >= start:
            for _ in range(per):
                if sec:
                    x = sec.pop(0)
                    out.extend(x if isinstance(x, list) else [x])
    for x in sec:
        out.extend(x if isinstance(x, list) else [x])
    return out

def kernel_header(name):
    return f""".globl {name}
.p2align 8
.type {name},@function
{name}:
"""

def kernel_desc(name, nvgpr, nsgpr=102, accum=None):
    if accum is None:
        accum = (nvgpr + 3) // 4 * 4
    return f""".p2align 6
.amdhsa_kernel {name}
  .amdhsa_next_free_vgpr {nvgpr}
  .amdhsa_next_free_sgpr {nsgpr}
  .amdhsa_accum_offset {accum}
  .amdhsa_group_segment_fixed_size 0
  .amdhsa_kernarg_size 80
  .amdhsa_user_sgpr_count 2
  .amdhsa_user_sgpr_kernarg_segment_ptr 1
  .amdhsa_system_sgpr_workgroup_id_x 1
.end_amdhsa_kernel
"""

WS_QF = 0
WS_KVF = 8 << 20
WS_OF = 24 << 20
WS_KN = 32 << 20
WS_G = (32 << 20) + 65536
WS_END = (32 << 20) + 65536 + 16384
```

```python
from asmlib import *
from gemm1 import f32bits, dpp_reduce
import math

NEG = f32bits(-1e30)
THR = f32bits(2.0 ** -40)

def krow(r):
    return 16 * ((r >> 2) & 1) + 8 * (r >> 3) + (r & 3)

def gen_attn(name="attn_kernel"):
    A = Asm()
    R = RegAlloc(1)
    lane = R.alloc("lane"); t0 = R.alloc("t0"); t1 = R.alloc("t1"); t2 = R.alloc("t2"); t3 = R.alloc("t3")
    vl16 = R.alloc("vl16"); vcur = R.alloc("vcur"); vnxt = R.alloc("vnxt"); vost = R.alloc("vost")
    vqh = R.alloc("vqh")
    vneg = R.alloc("vneg")
    nmb = [R.alloc("nmbA"), R.alloc("nmbB")]
    gf = [R.alloc("gA"), R.alloc("gB")]
    kn = [R.alloc("knA"), R.alloc("knB")]
    vbase = R.alloc("vbase")
    Q = [R.alloc("QA", 8), R.alloc("QB", 8)]
    Kb = [R.alloc("K0", 8), R.alloc("K1", 8)]
    Vb = [R.alloc("V0", 8), R.alloc("V1", 8)]
    P = [R.alloc("P0", 8), R.alloc("P1", 8)]
    ones = R.alloc("ones", 4); L = R.alloc("L", 4)
    S = [R.alloc("S0", 16), R.alloc("S1", 16)]
    O = R.alloc("O", 16); Cb = R.alloc("Cb", 16); Cm = R.alloc("Cm", 16)
    nv = R.next
    SWS, SD = 16, 20
    s_head, s_qb, s_w, s_t, s_t2, s_tr, s_st, s_src, s_m0w, s_i = 32, 33, 34, 35, 36, 37, 38, 39, 40, 41
    s_kvA, s_kvB, s_oA, s_oB, s_slot, s_k2 = 42, 43, 44, 45, 46, 47
    s_ft, s_fe, s_fa = 48, 49, 50
    SM = [60, 62, 64, 66]

    A("s_cmp_ge_u32 s2, 256")
    A(f"s_cbranch_scc1 L_{name}_end")
    A("s_load_dwordx2 s[12:13], s[0:1], 72")
    A(f"v_lshrrev_b32 {v(t0)}, 6, v0")
    A(f"v_and_b32 {v(lane)}, 63, v0")
    A(f"v_readfirstlane_b32 {s(s_w)}, {v(t0)}")
    A(f"s_and_b32 {s(s_t)}, s2, 7")
    A(f"s_lshr_b32 {s(s_t2)}, s2, 3")
    A(f"s_lshl_b32 {s(s_head)}, {s(s_t)}, 2")
    A(f"s_and_b32 {s(s_t)}, {s(s_t2)}, 3")
    A(f"s_add_u32 {s(s_head)}, {s(s_head)}, {s(s_t)}")
    A(f"s_lshr_b32 {s(s_qb)}, {s(s_t2)}, 2")
    A(f"s_lshl_b32 {s(s_i)}, {s(s_qb)}, 3")
    A(f"s_add_u32 {s(s_i)}, {s(s_i)}, {s(s_w)}")
    A(f"v_lshlrev_b32 {v(vl16)}, 4, {v(lane)}")
    A(f"s_lshl_b32 {s(s_m0w)}, {s(s_w)}, 12")
    A(f"s_lshl_b32 {s(s_kvA)}, {s(s_head)}, 18")
    A(f"s_add_u32 {s(s_kvA)}, {s(s_kvA)}, {WS_KVF}")
    A(f"s_add_u32 {s(s_kvB)}, {s(s_kvA)}, {8 << 20}")
    A(f"s_lshl_b32 {s(s_oA)}, {s(s_i)}, 17")
    A(f"s_lshl_b32 {s(s_t)}, {s(s_head)}, 11")
    A(f"s_add_u32 {s(s_oA)}, {s(s_oA)}, {s(s_t)}")
    A(f"s_add_u32 {s(s_oA)}, {s(s_oA)}, {WS_OF}")
    A(f"s_add_u32 {s(s_oB)}, {s(s_oA)}, 65536")
    A("s_waitcnt lgkmcnt(0)")
    for b in (SWS, SD):
        A(f"s_mov_b32 {s(b)}, s12")
        A(f"s_mov_b32 {s(b+1)}, s13")
        A(f"s_mov_b32 {s(b+2)}, {WS_END}")
        A(f"s_mov_b32 {s(b+3)}, 0x00020000")
    A.c("register loads: Q (A,B), KN (A,B), G (A,B)")
    A(f"s_lshl_b32 {s(s_t)}, {s(s_head)}, 6")
    A(f"s_add_u32 {s(s_t)}, {s(s_t)}, {s(s_i)}")
    A(f"s_lshl_b32 {s(s_t)}, {s(s_t)}, 11")
    if WS_QF: A(f"s_add_u32 {s(s_t)}, {s(s_t)}, {WS_QF}")
    A(f"s_add_u32 {s(s_t2)}, {s(s_t)}, {4 << 20}")
    A(f"buffer_load_dwordx4 {v(Q[0],4)}, {v(vl16)}, {s(SWS,4)}, {s(s_t)} offen")
    A(f"buffer_load_dwordx4 {v(Q[0]+4,4)}, {v(vl16)}, {s(SWS,4)}, {s(s_t)} offen offset:1024")
    A(f"buffer_load_dwordx4 {v(Q[1],4)}, {v(vl16)}, {s(SWS,4)}, {s(s_t2)} offen")
    A(f"buffer_load_dwordx4 {v(Q[1]+4,4)}, {v(vl16)}, {s(SWS,4)}, {s(s_t2)} offen offset:1024")
    A(f"v_and_b32 {v(t0)}, 31, {v(lane)}")
    A(f"v_lshlrev_b32 {v(t1)}, 2, {v(t0)}")
    A(f"s_lshl_b32 {s(s_t)}, {s(s_head)}, 7")
    A(f"s_add_u32 {s(s_t)}, {s(s_t)}, {WS_KN}")
    A(f"s_add_u32 {s(s_t2)}, {s(s_t)}, 4096")
    A(f"buffer_load_dword {v(kn[0])}, {v(t1)}, {s(SWS,4)}, {s(s_t)} offen")
    A(f"buffer_load_dword {v(kn[1])}, {v(t1)}, {s(SWS,4)}, {s(s_t2)} offen")
    A(f"s_lshl_b32 {s(s_t)}, {s(s_i)}, 7")
    A(f"s_add_u32 {s(s_t)}, {s(s_t)}, {WS_G}")
    A(f"s_add_u32 {s(s_t2)}, {s(s_t)}, 8192")
    A(f"buffer_load_dword {v(gf[0])}, {v(t1)}, {s(SWS,4)}, {s(s_t)} offen")
    A(f"buffer_load_dword {v(gf[1])}, {v(t1)}, {s(SWS,4)}, {s(s_t2)} offen")

    def dma(slot_expr_m0, src_sgpr):
        out = [slot_expr_m0, "s_nop 0"]
        for i in range(4):
            out.append(f"buffer_load_dwordx4 {v(vl16)}, {s(SD,4)}, {s(src_sgpr)} offen offset:{i*1024} lds")
        return out
    A.c("DMA: A window (slots 0,1), B stages 0,1 (slots 2,3)")
    A(f"s_max_u32 {s(s_t)}, {s(s_qb)}, 1")
    A(f"s_sub_u32 {s(s_t)}, {s(s_t)}, 1")
    A(f"s_lshl_b32 {s(s_t)}, {s(s_t)}, 15")
    A(f"s_add_u32 {s(s_t)}, {s(s_t)}, {s(s_kvA)}")
    A(f"s_add_u32 {s(s_t)}, {s(s_t)}, {s(s_m0w)}")
    for ln in dma(f"s_mov_b32 m0, {s(s_m0w)}", s_t): A(ln)
    A(f"s_lshl_b32 {s(s_t)}, {s(s_qb)}, 15")
    A(f"s_add_u32 {s(s_t)}, {s(s_t)}, {s(s_kvA)}")
    A(f"s_add_u32 {s(s_t)}, {s(s_t)}, {s(s_m0w)}")
    for ln in dma(f"s_add_u32 m0, {s(s_m0w)}, 32768", s_t): A(ln)
    A(f"s_add_u32 {s(s_src)}, {s(s_kvB)}, {s(s_m0w)}")
    for ln in dma(f"s_add_u32 m0, {s(s_m0w)}, 65536", s_src): A(ln)
    A(f"s_add_u32 {s(s_src)}, {s(s_src)}, 32768")
    for ln in dma(f"s_add_u32 m0, {s(s_m0w)}, 98304", s_src): A(ln)
    A(f"s_add_u32 {s(s_src)}, {s(s_src)}, 32768")
    A.c("lane constants")
    A(f"v_lshrrev_b32 {v(t1)}, 5, {v(lane)}")
    A(f"v_lshlrev_b32 {v(t2)}, 2, {v(t1)}")
    A(f"v_sub_u32 {v(vqh)}, {v(t0)}, {v(t2)}")
    A(f"v_mov_b32 {v(vneg)}, {hex(NEG)}")
    A(f"v_lshrrev_b32 {v(t2)}, 4, {v(t0)}")
    A(f"v_lshlrev_b32 {v(vost)}, 10, {v(t2)}")
    A(f"v_lshl_add_u32 {v(vost)}, {v(t1)}, 8, {v(vost)}")
    A(f"v_and_b32 {v(t2)}, 15, {v(lane)}")
    A(f"v_lshl_add_u32 {v(vost)}, {v(t2)}, 4, {v(vost)}")
    A(f"v_lshrrev_b32 {v(t2)}, 4, {v(lane)}")
    A(f"v_lshrrev_b32 {v(t3)}, 2, {v(lane)}")
    A(f"v_xor_b32 {v(t2)}, {v(t2)}, {v(t3)}")
    A(f"v_and_b32 {v(t2)}, 1, {v(t2)}")
    A(f"v_sub_u32 {v(t2)}, {v(t2)}, 1")
    A(f"v_and_b32 {v(ones)}, 0x3f803f80, {v(t2)}")
    for r in range(1, 4): A(f"v_mov_b32 {v(ones+r)}, {v(ones)}")
    A("s_waitcnt vmcnt(16)")
    A.c("bound: -sqrt(|q'|^2 * max|k|^2)")
    for br in range(2):
        A(f"v_mov_b32 {v(t2)}, 0")
        A("s_nop 0")
        for r in range(8):
            A(f"v_dot2_f32_bf16 {v(t2)}, {v(Q[br]+r)}, {v(Q[br]+r)}, {v(t2)}")
        A("s_nop 3")
        A(f"v_mov_b32 {v(t3)}, {v(t2)}")
        A("s_nop 1")
        A(f"v_permlane32_swap_b32 {v(t2)}, {v(t3)}")
        A("s_nop 1")
        A(f"v_add_f32 {v(t2)}, {v(t2)}, {v(t3)}")
        dpp_reduce(A, "v_max_f32", kn[br])
        A("s_nop 1")
        A(f"v_readlane_b32 {s(s_k2)}, {v(kn[br])}, 63")
        A("s_nop 2")
        A(f"v_mul_f32 {v(t2)}, {s(s_k2)}, {v(t2)}")
        A(f"v_sqrt_f32 {v(t2)}, {v(t2)}")
        A("s_nop 0")
        A(f"v_sub_f32 {v(nmb[br])}, 0, {v(t2)}")

    def mask_block(dst, base, vd):
        for r0 in range(0, 16, 4):
            for k in range(4):
                r = r0 + k
                A(f"v_subrev_u32 {v(dst+r)}, {krow(r)}, {v(vd)}")
            for k in range(4):
                r = r0 + k
                A(f"v_cmp_gt_u32 {s(SM[k],2)}, {s(s_fa)}, {v(dst+r)}")
            A("s_nop 1")
            for k in range(4):
                r = r0 + k
                A(f"v_cndmask_b32 {v(dst+r)}, {v(vneg)}, {v(base)}, {s(SM[k],2)}")

    A(f"s_movk_i32 {s(s_fa)}, 256")
    A.c("A-phase C blocks")
    A(f"s_cmp_eq_u32 {s(s_qb)}, 0")
    A(f"s_cselect_b32 {s(s_t)}, 0x10000, {s(s_fa)}")
    A(f"v_add_u32 {v(t2)}, {s(s_t)}, {v(vqh)}")
    mask_block(Cm, nmb[0], t2)
    A(f"s_sub_u32 {s(s_t)}, 8, {s(s_w)}")
    A(f"s_cmp_eq_u32 {s(s_qb)}, 0")
    A(f"s_cselect_b32 {s(s_tr)}, {s(s_t)}, 0")
    A(f"s_cselect_b64 vcc, -1, 0")
    A("s_nop 1")
    A(f"v_cndmask_b32 {v(t2)}, {v(nmb[0])}, {v(vneg)}, vcc")
    for r in range(16): A(f"v_mov_b32 {v(Cb+r)}, {v(t2)}")
    for r in range(16): A(f"v_mov_b32 {v(O+r)}, 0")
    for r in range(4): A(f"v_mov_b32 {v(L+r)}, 0")
    A(f"v_add_u32 {v(vcur)}, {s(s_m0w)}, {v(vl16)}")
    A("s_waitcnt vmcnt(8)")
    A("s_barrier")

    def rdK(j, addr, off):
        b = Kb[j % 2]
        return [f"ds_read_b128 {v(b,4)}, {v(addr)} offset:{off}", f"ds_read_b128 {v(b+4,4)}, {v(addr)} offset:{off+1024}"]
    def rdV(j, addr, off):
        b = Vb[j % 2]
        return [f"ds_read_b128 {v(b,4)}, {v(addr)} offset:{off+2048}", f"ds_read_b128 {v(b+4,4)}, {v(addr)} offset:{off+3072}"]
    def qk(j, q, C):
        d = S[j % 2]; k = Kb[j % 2]
        return [f"v_mfma_f32_32x32x16_bf16 {v(d,16)}, {v(k,4)}, {v(q,4)}, {v(C,16)}",
                f"v_mfma_f32_32x32x16_bf16 {v(d,16)}, {v(k+4,4)}, {v(q+4,4)}, {v(d,16)}"]
    def pv(j):
        p = P[j % 2]; vv = Vb[j % 2]
        return [f"v_mfma_f32_32x32x16_bf16 {v(O,16)}, {v(vv,4)}, {v(p,4)}, {v(O,16)}",
                f"v_mfma_f32_32x32x16_bf16 {v(O,16)}, {v(vv+4,4)}, {v(p+4,4)}, {v(O,16)}",
                f"v_mfma_f32_16x16x32_bf16 {v(L,4)}, {v(ones,4)}, {v(p,4)}, {v(L,4)}",
                f"v_mfma_f32_16x16x32_bf16 {v(L,4)}, {v(ones,4)}, {v(p+4,4)}, {v(L,4)}"]
    def ex(j, r): return f"v_exp_f32 {v(S[j%2]+r)}, {v(S[j%2]+r)}"
    def cv(j, k): return f"v_cvt_pk_bf16_f32 {v(P[j%2]+k)}, {v(S[j%2]+2*k)}, {v(S[j%2]+2*k+1)}"

    def iteration(j, QK, PV, RK, RV, wait, extra=None):
        out = []
        if wait is not None: out.append(f"s_waitcnt lgkmcnt({wait})")
        e = [ex(j, r) for r in range(16)]; c = [cv(j, k) for k in range(8)]
        QK = QK or [None, None]; PV = PV or [None] * 4
        seq = [QK[0], e[0], e[1], e[2], QK[1], e[3], e[4], e[5]] + list(RK) + \
              [PV[0], e[6], e[7], c[0], c[1], PV[1], e[8], e[9], c[2], c[3]] + list(RV) + (extra or []) + \
              [PV[2], e[10], e[11], PV[3], e[12], e[13], e[14], e[15], c[4], c[5], c[6], c[7]]
        out += [x for x in seq if x is not None]
        return out

    N = 9
    for ln in rdK(0, vcur, 0) + rdK(1, vcur, 4096) + rdV(0, vcur, 0): A(ln)
    A("s_waitcnt lgkmcnt(4)")
    for ln in qk(0, Q[0], Cm): A(ln)
    for ln in rdK(2, vcur, 8192): A(ln)
    A.c("Cm <- lower mask (diagonal tile)")
    A("s_nop 7")
    mask_block(Cm, nmb[0], vqh)
    prev_reads = 2
    for j in range(N):
        QKi = None
        if j + 1 < N:
            n = j + 1
            if n <= 7:
                A(f"s_cmp_eq_u32 {s(s_tr)}, {n}")
                A(f"s_cbranch_scc0 L_{name}_sk{n}")
                for r in range(16): A(f"v_mov_b32 {v(Cb+r)}, {v(nmb[0])}")
                A("s_nop 1")
                A.label(f"L_{name}_sk{n}")
            QKi = qk(n, Q[0], Cm if n == 8 else Cb)
        RK = rdK(j + 3, vcur, (j + 3) * 4096) if j + 3 < N else []
        RV = rdV(j + 1, vcur, (j + 1) * 4096) if j + 1 < N else []
        PVi = pv(j - 1) if j >= 1 else None
        if j == 0:
            A("s_nop 7"); A("s_nop 3")
        for ln in iteration(j, QKi, PVi, RK, RV, prev_reads): A(ln)
        prev_reads = len(RK) + len(RV)
    A("s_waitcnt lgkmcnt(0)")
    A("s_nop 1")
    for ln in pv(N - 1): A(ln)

    def epilogue(br, so, lbl):
        A("s_nop 15")
        A("s_nop 3")
        A(f"s_mov_b32 {s(s_t)}, {hex(THR)}")
        A(f"v_cmp_le_f32 vcc, {s(s_t)}, {v(L)}")
        A("s_nop 3")
        A("s_cmp_eq_u64 vcc, exec")
        A(f"s_cbranch_scc0 L_{name}_fb{lbl}")
        A.label(f"L_{name}_st{lbl}")
        A(f"v_rcp_f32 {v(t2)}, {v(L)}")
        A("s_nop 0")
        A(f"v_mul_f32 {v(t2)}, {v(gf[br])}, {v(t2)}")
        for r in range(16): A(f"v_mul_f32 {v(O+r)}, {v(t2)}, {v(O+r)}")
        d = S[0]
        for k in range(8): A(f"v_cvt_pk_bf16_f32 {v(d+k)}, {v(O+2*k)}, {v(O+2*k+1)}")
        A(f"buffer_store_dwordx4 {v(d,4)}, {v(vost)}, {s(SWS,4)}, {s(so)} offen")
        A(f"buffer_store_dwordx4 {v(d+4,4)}, {v(vost)}, {s(SWS,4)}, {s(so)} offen offset:512")
    epilogue(0, s_oA, "A")

    A.c("B phase init")
    for r in range(16): A(f"v_mov_b32 {v(Cb+r)}, {v(nmb[1])}")
    for r in range(16): A(f"v_mov_b32 {v(O+r)}, 0")
    for r in range(4): A(f"v_mov_b32 {v(L+r)}, 0")
    for r in range(8): A(f"v_mov_b32 {v(P[1]+r)}, 0")
    for r in range(8): A(f"v_mov_b32 {v(Vb[1]+r)}, 0")
    A(f"v_add_u32 {v(vcur)}, 65536, {v(vl16)}")
    A(f"v_add_u32 {v(vnxt)}, 98304, {v(vl16)}")
    A("s_waitcnt vmcnt(6)")
    A("s_barrier")
    for ln in dma(f"s_mov_b32 m0, {s(s_m0w)}", s_src): A(ln)
    A(f"s_add_u32 {s(s_src)}, {s(s_src)}, 32768")
    A(f"s_add_u32 {s(s_slot)}, {s(s_m0w)}, 32768")
    for ln in rdK(0, vcur, 0) + rdK(1, vcur, 4096) + rdV(0, vcur, 0): A(ln)
    A("s_waitcnt lgkmcnt(4)")
    for ln in qk(0, Q[1], Cb): A(ln)
    for ln in rdK(2, vcur, 8192): A(ln)
    A(f"s_mov_b32 {s(s_st)}, 0")
    A("s_nop 7"); A("s_nop 3")
    A(".p2align 6")
    A.label(f"L_{name}_loop")
    for i in range(8):
        j = i
        if i == 5:
            A.c("SYNC: next stage visible; refill the slot of the previous stage")
            A(f"s_cmp_lt_u32 {s(s_st)}, 5")
            A(f"s_cselect_b32 {s(SD+2)}, {WS_END}, 0")
            A("s_waitcnt vmcnt(4)")
            A("s_barrier")
        RK = rdK(j + 3, vcur, (j + 3) * 4096) if j + 3 < 8 else rdK(j + 3, vnxt, (j + 3 - 8) * 4096)
        RV = rdV(j + 1, vcur, (j + 1) * 4096) if j + 1 < 8 else rdV(j + 1, vnxt, 0)
        extra = None
        if i == 5:
            extra = dma(f"s_mov_b32 m0, {s(s_slot)}", s_src) + [
                f"s_add_u32 {s(s_src)}, {s(s_src)}, 32768",
                f"s_add_u32 {s(s_slot)}, {s(s_slot)}, 32768",
                f"s_and_b32 {s(s_slot)}, {s(s_slot)}, 0x1ffff"]
        for ln in iteration(j, qk(j + 1, Q[1], Cb), pv(j - 1), RK, RV, 4, extra): A(ln)
    A(f"v_mov_b32 {v(vcur)}, {v(vnxt)}")
    A(f"v_add_u32 {v(vnxt)}, 32768, {v(vnxt)}")
    A(f"v_and_b32 {v(vnxt)}, 0x1ffff, {v(vnxt)}")
    A(f"s_add_u32 {s(s_st)}, {s(s_st)}, 1")
    A(f"s_cmp_lt_u32 {s(s_st)}, 8")
    A(f"s_cbranch_scc1 L_{name}_loop")
    A("s_waitcnt lgkmcnt(0)")
    for ln in pv(7): A(ln)
    epilogue(1, s_oB, "B")
    A.label(f"L_{name}_end")
    A("s_endpgm")

    def fallback(br, lbl):
        kv = s_kvA if br == 0 else s_kvB
        A.label(f"L_{name}_fb{lbl}")
        A("s_waitcnt vmcnt(0) lgkmcnt(0)")
        if br == 0:
            A(f"s_max_u32 {s(s_ft)}, {s(s_i)}, 8")
            A(f"s_sub_u32 {s(s_ft)}, {s(s_ft)}, 8")
            A(f"s_add_u32 {s(s_fe)}, {s(s_i)}, 1")
        else:
            A(f"s_mov_b32 {s(s_ft)}, 0")
            A(f"s_mov_b32 {s(s_fe)}, 64")
        for ps in range(2):
            if ps == 0:
                A(f"v_mov_b32 {v(vbase)}, 0")
                A(f"v_mov_b32 {v(t3)}, {v(vneg)}")
            else:
                for r in range(16): A(f"v_mov_b32 {v(O+r)}, 0")
                for r in range(4): A(f"v_mov_b32 {v(L+r)}, 0")
            A(f"s_mov_b32 {s(s_t2)}, {s(s_ft)}")
            A.label(f"L_{name}_fb{lbl}_p{ps}")
            A(f"s_lshl_b32 {s(s_t)}, {s(s_t2)}, 12")
            A(f"s_add_u32 {s(s_t)}, {s(s_t)}, {s(kv)}")
            A(f"buffer_load_dwordx4 {v(Kb[0],4)}, {v(vl16)}, {s(SWS,4)}, {s(s_t)} offen")
            A(f"buffer_load_dwordx4 {v(Kb[0]+4,4)}, {v(vl16)}, {s(SWS,4)}, {s(s_t)} offen offset:1024")
            if ps == 1:
                A(f"buffer_load_dwordx4 {v(Vb[0],4)}, {v(vl16)}, {s(SWS,4)}, {s(s_t)} offen offset:2048")
                A(f"buffer_load_dwordx4 {v(Vb[0]+4,4)}, {v(vl16)}, {s(SWS,4)}, {s(s_t)} offen offset:3072")
            if br == 0:
                A(f"s_sub_u32 {s(s_t)}, {s(s_i)}, {s(s_t2)}")
                A(f"s_lshl_b32 {s(s_t)}, {s(s_t)}, 5")
                A(f"v_add_u32 {v(t2)}, {s(s_t)}, {v(vqh)}")
                mask_block(Cb, vbase, t2)
            else:
                for r in range(16): A(f"v_mov_b32 {v(Cb+r)}, {v(vbase)}")
            A("s_waitcnt vmcnt(0)")
            A("s_nop 1")
            for ln in qk(0, Q[br], Cb): A(ln)
            A("s_nop 15"); A("s_nop 3")
            if ps == 0:
                for r in range(0, 16, 2):
                    A(f"v_max3_f32 {v(t3)}, {v(t3)}, {v(S[0]+r)}, {v(S[0]+r+1)}")
            else:
                for r in range(16): A(ex(0, r))
                A("s_nop 0")
                for k in range(8): A(cv(0, k))
                A("s_nop 1")
                for ln in pv(0): A(ln)
                A("s_nop 7")
            A(f"s_add_u32 {s(s_t2)}, {s(s_t2)}, 1")
            A(f"s_cmp_lt_u32 {s(s_t2)}, {s(s_fe)}")
            A(f"s_cbranch_scc1 L_{name}_fb{lbl}_p{ps}")
            if ps == 0:
                A(f"v_mov_b32 {v(t2)}, {v(t3)}")
                A("s_nop 1")
                A(f"v_permlane32_swap_b32 {v(t2)}, {v(t3)}")
                A("s_nop 1")
                A(f"v_max_f32 {v(t2)}, {v(t2)}, {v(t3)}")
                A(f"v_sub_f32 {v(vbase)}, 0, {v(t2)}")
        A("s_nop 15"); A("s_nop 3")
        A(f"s_branch L_{name}_st{lbl}")
    fallback(0, "A")
    fallback(1, "B")
    return kernel_header(name) + A.text(), kernel_desc(name, nv), (name, 256, 512, 131072)
```

```python
from asmlib import *
import math, struct

def f32bits(x):
    return struct.unpack("<I", struct.pack("<f", x))[0]

QSCALE = (32 ** -0.5) * math.log2(math.e)

def dpp_reduce(A, op, vr, tmp=None):
    for sh in (1, 2, 4, 8):
        A("s_nop 1")
        A(f"{op}_dpp {v(vr)}, {v(vr)}, {v(vr)} row_shr:{sh} row_mask:0xf bank_mask:0xf")
    A("s_nop 1")
    A(f"{op}_dpp {v(vr)}, {v(vr)}, {v(vr)} row_bcast:15 row_mask:0xa bank_mask:0xf")
    A("s_nop 1")
    A(f"{op}_dpp {v(vr)}, {v(vr)}, {v(vr)} row_bcast:31 row_mask:0xc bank_mask:0xf")

def gen_gemm1(name="qkv_kernel"):
    A = Asm()
    R = RegAlloc(1)
    lane = R.alloc("lane"); t0 = R.alloc("t0"); t1 = R.alloc("t1"); t2 = R.alloc("t2"); t3 = R.alloc("t3")
    voffx = [R.alloc("voffx0"), R.alloc("voffx1")]
    voffw = R.alloc("voffw")
    adx = [R.alloc("adx0"), R.alloc("adx1")]
    adw = [R.alloc("adw0"), R.alloc("adw1")]
    vq = R.alloc("vq"); vk = R.alloc("vk")
    X = [[R.alloc(f"X{p}{tj}", 4) for tj in range(4)] for p in range(2)]
    W = [[R.alloc(f"W{p}{f}", 4) for f in range(6)] for p in range(2)]
    acc = [[R.alloc(f"acc{f}{tj}", 4) for tj in range(4)] for f in range(6)]
    nv = R.next
    SX, SW, SWS, SG = 16, 20, 24, 28
    s_mt, s_nt, s_br, s_hp, s_w, s_wm, s_wn = 32, 33, 34, 35, 36, 37, 38
    s_it, s_kx, s_kw, s_t, s_mx, s_mw, s_t2, s_head = 40, 41, 42, 43, 44, 45, 46, 47
    s_sc = 48
    s_q, s_kv0, s_kv1 = 50, 51, 52
    XSZ = 256 * 2048
    WSZ = 1024 * 6144
    LX = [0, 32768]; LW = [65536, 65536 + 24576]

    A("s_cmp_ge_u32 s2, 256")
    A(f"s_cbranch_scc1 L_{name}_end")
    A("s_load_dwordx2 s[4:5], s[0:1], 0")
    A("s_load_dwordx2 s[6:7], s[0:1], 8")
    A("s_load_dwordx2 s[8:9], s[0:1], 32")
    A("s_load_dwordx2 s[10:11], s[0:1], 48")
    A("s_load_dwordx2 s[12:13], s[0:1], 72")
    A(f"v_lshrrev_b32 {v(t0)}, 6, v0")
    A(f"v_and_b32 {v(lane)}, 63, v0")
    A(f"v_readfirstlane_b32 {s(s_w)}, {v(t0)}")
    A.c("decode workgroup -> (mt, nt)")
    A(f"s_and_b32 {s(s_t)}, s2, 7")
    A(f"s_lshr_b32 {s(s_t2)}, s2, 3")
    A(f"s_and_b32 {s(s_mt)}, {s(s_t)}, 1")
    A(f"s_lshl_b32 {s(s_mt)}, {s(s_mt)}, 2")
    A(f"s_and_b32 {s(s_nt)}, {s(s_t2)}, 3")
    A(f"s_add_u32 {s(s_mt)}, {s(s_mt)}, {s(s_nt)}")
    A(f"s_lshr_b32 {s(s_nt)}, {s(s_t)}, 1")
    A(f"s_lshl_b32 {s(s_nt)}, {s(s_nt)}, 3")
    A(f"s_lshr_b32 {s(s_t2)}, {s(s_t2)}, 2")
    A(f"s_add_u32 {s(s_nt)}, {s(s_nt)}, {s(s_t2)}")
    A(f"s_lshr_b32 {s(s_br)}, {s(s_nt)}, 4")
    A(f"s_and_b32 {s(s_hp)}, {s(s_nt)}, 15")
    A(f"s_and_b32 {s(s_wm)}, {s(s_w)}, 3")
    A(f"s_lshr_b32 {s(s_wn)}, {s(s_w)}, 2")
    A(f"s_lshl_b32 {s(s_head)}, {s(s_hp)}, 1")
    A(f"s_add_u32 {s(s_head)}, {s(s_head)}, {s(s_wn)}")
    A(f"s_lshl_b32 {s(s_mx)}, {s(s_w)}, 12")
    A(f"s_lshl_b32 {s(s_mw)}, {s(s_w)}, 10")
    A.c("DMA source offsets.  r = lane>>3, p = lane&7")
    A(f"v_lshrrev_b32 {v(t0)}, 3, {v(lane)}")
    A(f"v_and_b32 {v(t1)}, 7, {v(lane)}")
    A(f"v_lshrrev_b32 {v(t2)}, 1, {v(t0)}")
    A(f"v_xor_b32 {v(t3)}, {v(t1)}, {v(t2)}")
    A(f"s_lshl_b32 {s(s_t)}, {s(s_w)}, 5")
    A(f"v_add_u32 {v(voffx[0])}, {s(s_t)}, {v(t0)}")
    A(f"v_lshlrev_b32 {v(voffx[0])}, 11, {v(voffx[0])}")
    A(f"v_lshl_add_u32 {v(voffx[0])}, {v(t3)}, 4, {v(voffx[0])}")
    A(f"v_xor_b32 {v(voffx[1])}, 64, {v(voffx[0])}")
    A(f"v_and_b32 {v(t2)}, 1, {v(t2)}")
    A(f"s_and_b32 {s(s_t)}, {s(s_w)}, 1")
    A(f"s_lshl_b32 {s(s_t)}, {s(s_t)}, 1")
    A(f"v_or_b32 {v(t2)}, {s(s_t)}, {v(t2)}")
    A(f"v_lshlrev_b32 {v(t2)}, 1, {v(t2)}")
    A(f"v_xor_b32 {v(t3)}, {v(t1)}, {v(t2)}")
    A(f"s_lshl_b32 {s(s_t)}, {s(s_w)}, 3")
    A(f"v_add_u32 {v(voffw)}, {s(s_t)}, {v(t0)}")
    A(f"v_mul_u32_u24 {v(voffw)}, 6144, {v(voffw)}")
    A(f"v_lshl_add_u32 {v(voffw)}, {v(t3)}, 4, {v(voffw)}")
    A(f"s_lshl_b32 {s(s_t)}, {s(s_hp)}, 7")
    A(f"v_add_u32 {v(voffw)}, {s(s_t)}, {v(voffw)}")
    A("s_waitcnt lgkmcnt(0)")
    A.c("SRDs")
    A(f"s_lshl_b32 {s(s_t)}, {s(s_mt)}, 19")
    A(f"s_add_u32 {s(SX)}, s4, {s(s_t)}")
    A(f"s_addc_u32 {s(SX+1)}, s5, 0")
    A(f"s_mov_b32 {s(SX+2)}, {XSZ}")
    A(f"s_mov_b32 {s(SX+3)}, 0x00020000")
    A(f"s_cmp_eq_u32 {s(s_br)}, 0")
    A(f"s_cselect_b32 {s(SW)}, s6, s8")
    A(f"s_cselect_b32 {s(SW+1)}, s7, s9")
    A(f"s_mov_b32 {s(SW+2)}, {WSZ}")
    A(f"s_mov_b32 {s(SW+3)}, 0x00020000")
    A(f"s_mov_b32 {s(SWS)}, s12")
    A(f"s_mov_b32 {s(SWS+1)}, s13")
    A(f"s_mov_b32 {s(SWS+2)}, {WS_END}")
    A(f"s_mov_b32 {s(SWS+3)}, 0x00020000")
    A(f"s_mov_b32 {s(SG)}, s10")
    A(f"s_mov_b32 {s(SG+1)}, s11")
    A(f"s_mov_b32 {s(SG+2)}, 2048")
    A(f"s_mov_b32 {s(SG+3)}, 0x00020000")
    A(f"s_mov_b32 {s(s_kx)}, 0")
    A(f"s_mov_b32 {s(s_kw)}, 0")

    def dma_items(b):
        items = []
        for i in range(4):
            items.append([f"s_add_u32 m0, {s(s_mx)}, {LX[b] + i*1024}",
                          f"s_add_u32 {s(s_t)}, {s(s_kx)}, {i*16384}",
                          f"buffer_load_dwordx4 {v(voffx[i&1])}, {s(SX,4)}, {s(s_t)} offen lds"])
        for seg in range(3):
            items.append([f"s_add_u32 m0, {s(s_mw)}, {LW[b] + seg*8192}",
                          f"s_add_u32 {s(s_t)}, {s(s_kw)}, {seg*2048}",
                          f"buffer_load_dwordx4 {v(voffw)}, {s(SW,4)}, {s(s_t)} offen lds"])
        items.append([f"s_add_u32 {s(s_kx)}, {s(s_kx)}, 128",
                      f"s_add_u32 {s(s_kw)}, {s(s_kw)}, {64*6144}"])
        return items

    for b in range(2):
        for it in dma_items(b):
            for ln in it: A(ln)

    A.c("gate: token = mt*256 + nt*8 + w ; loads into X[0][0..3] regs (free for now)")
    gx = X[0][0]; gw = X[0][2]
    A(f"s_lshl_b32 {s(s_t)}, {s(s_nt)}, 3")
    A(f"s_add_u32 {s(s_t)}, {s(s_t)}, {s(s_w)}")
    A(f"s_lshl_b32 {s(s_t2)}, {s(s_t)}, 11")
    A(f"v_lshlrev_b32 {v(t0)}, 5, {v(lane)}")
    A(f"buffer_load_dwordx4 {v(gx,4)}, {v(t0)}, {s(SX,4)}, {s(s_t2)} offen")
    A(f"buffer_load_dwordx4 {v(gx+4,4)}, {v(t0)}, {s(SX,4)}, {s(s_t2)} offen offset:16")
    A(f"buffer_load_dwordx4 {v(gw,4)}, {v(t0)}, {s(SG,4)}, 0 offen")
    A(f"buffer_load_dwordx4 {v(gw+4,4)}, {v(t0)}, {s(SG,4)}, 0 offen offset:16")

    A.c("LDS read addresses.  c = lane&15, g = lane>>4")
    A(f"v_and_b32 {v(t0)}, 15, {v(lane)}")
    A(f"v_lshrrev_b32 {v(t1)}, 4, {v(lane)}")
    A(f"v_lshrrev_b32 {v(t2)}, 1, {v(t0)}")
    A(f"v_xor_b32 {v(t2)}, {v(t1)}, {v(t2)}")
    A(f"s_lshl_b32 {s(s_t)}, {s(s_wm)}, 6")
    A(f"v_add_u32 {v(adx[0])}, {s(s_t)}, {v(t0)}")
    A(f"v_lshlrev_b32 {v(adx[0])}, 7, {v(adx[0])}")
    A(f"v_lshl_add_u32 {v(adx[0])}, {v(t2)}, 4, {v(adx[0])}")
    A(f"v_xor_b32 {v(adx[1])}, 64, {v(adx[0])}")
    A(f"v_lshlrev_b32 {v(vq)}, 9, {v(t1)}")
    A(f"v_lshl_add_u32 {v(vq)}, {v(t0)}, 4, {v(vq)}")
    A(f"v_lshrrev_b32 {v(t2)}, 3, {v(t0)}")
    A(f"v_lshlrev_b32 {v(vk)}, 9, {v(t1)}")
    A(f"v_lshl_add_u32 {v(vk)}, {v(t2)}, 8, {v(vk)}")
    A(f"v_and_b32 {v(t2)}, 7, {v(t0)}")
    A(f"v_lshl_add_u32 {v(vk)}, {v(t2)}, 4, {v(vk)}")
    A(f"v_lshrrev_b32 {v(t2)}, 2, {v(t0)}")
    A(f"v_lshl_add_u32 {v(t3)}, {v(t1)}, 3, {v(t2)}")
    A(f"v_lshlrev_b32 {v(adw[0])}, 7, {v(t3)}")
    A(f"v_and_b32 {v(t3)}, 3, {v(lane)}")
    A(f"v_lshl_add_u32 {v(adw[0])}, {v(t3)}, 3, {v(adw[0])}")
    A(f"v_lshrrev_b32 {v(t2)}, 1, {v(t2)}")
    A(f"v_and_b32 {v(t3)}, 1, {v(t1)}")
    A(f"v_lshl_add_u32 {v(t2)}, {v(t3)}, 1, {v(t2)}")
    A(f"s_lshl_b32 {s(s_t)}, {s(s_wn)}, 1")
    A(f"v_xor_b32 {v(t2)}, {s(s_t)}, {v(t2)}")
    A(f"v_lshl_add_u32 {v(adw[0])}, {v(t2)}, 5, {v(adw[0])}")
    A(f"v_add_u32 {v(adw[0])}, {LW[0]}, {v(adw[0])}")
    A(f"v_xor_b32 {v(adw[1])}, 32, {v(adw[0])}")
    A.c("zero accumulators")
    for f in range(6):
        for tj in range(4):
            for r in range(4):
                A(f"v_mov_b32 {v(acc[f][tj]+r)}, 0")
    A.c("gate compute")
    A("s_waitcnt vmcnt(0)")
    tA = W[0][0]; tB = W[0][1]; tP = W[0][2]
    gs = W[0][3]
    A(f"v_mov_b32 {v(gs)}, 0")
    A(f"s_mov_b32 {s(s_t)}, 0x3f803f80")
    for i in range(8):
        A(f"v_lshlrev_b32 {v(tA)}, 16, {v(gx+i)}")
        A(f"v_and_b32 {v(tA+1)}, 0xffff0000, {v(gx+i)}")
        A(f"v_lshlrev_b32 {v(tB)}, 16, {v(gw+i)}")
        A(f"v_and_b32 {v(tB+1)}, 0xffff0000, {v(gw+i)}")
        A(f"v_mul_f32 {v(tA)}, {v(tA)}, {v(tB)}")
        A(f"v_mul_f32 {v(tA+1)}, {v(tA+1)}, {v(tB+1)}")
        A(f"v_cvt_pk_bf16_f32 {v(tP)}, {v(tA)}, {v(tA+1)}")
        A(f"v_lshlrev_b32 {v(tA)}, 16, {v(tP)}")
        A(f"v_and_b32 {v(tA+1)}, 0xffff0000, {v(tP)}")
        A(f"v_add_f32 {v(gs)}, {v(gs)}, {v(tA)}")
        A(f"v_add_f32 {v(gs)}, {v(gs)}, {v(tA+1)}")
    dpp_reduce(A, "v_add_f32", gs)
    A(f"v_cvt_pk_bf16_f32 {v(tP)}, {v(gs)}, {v(gs)}")
    A(f"v_lshlrev_b32 {v(tA)}, 16, {v(tP)}")
    A(f"v_mul_f32 {v(tA)}, {hex(f32bits(-math.log2(math.e)))}, {v(tA)}")
    A(f"v_exp_f32 {v(tA)}, {v(tA)}")
    A("s_nop 0")
    A(f"v_add_f32 {v(tA)}, 1.0, {v(tA)}")
    A(f"v_rcp_f32 {v(tA)}, {v(tA)}")
    A("s_nop 0")
    A(f"v_cvt_pk_bf16_f32 {v(tP)}, {v(tA)}, {v(tA)}")
    A(f"v_lshlrev_b32 {v(tA)}, 16, {v(tP)}")
    A(f"v_sub_f32 {v(tB)}, 1.0, {v(tA)}")
    A(f"v_cvt_pk_bf16_f32 {v(tP)}, {v(tB)}, {v(tB)}")
    A(f"v_lshlrev_b32 {v(tB)}, 16, {v(tP)}")
    A(f"s_lshl_b32 {s(s_t)}, {s(s_mt)}, 8")
    A(f"s_lshl_b32 {s(s_t2)}, {s(s_nt)}, 3")
    A(f"s_add_u32 {s(s_t)}, {s(s_t)}, {s(s_t2)}")
    A(f"s_add_u32 {s(s_t)}, {s(s_t)}, {s(s_w)}")
    A(f"s_lshl_b32 {s(s_t)}, {s(s_t)}, 2")
    A(f"s_add_u32 {s(s_t)}, {s(s_t)}, {WS_G}")
    A(f"s_add_u32 {s(s_t2)}, {s(s_t)}, 8192")
    A(f"v_mov_b32 {v(t0)}, 0")
    A("s_mov_b32 exec_lo, 0")
    A("s_mov_b32 exec_hi, 0x80000000")
    A(f"buffer_store_dword {v(tA)}, {v(t0)}, {s(SWS,4)}, {s(s_t)} offen")
    A(f"buffer_store_dword {v(tB)}, {v(t0)}, {s(SWS,4)}, {s(s_t2)} offen")
    A("s_mov_b64 exec, -1")
    A("s_barrier")

    def reads(p, b, sstep):
        out = []
        xs = [f"ds_read_b128 {v(X[p][tj],4)}, {v(adx[sstep])} offset:{LX[b] + tj*2048}" for tj in range(4)]
        ws = []
        for f in range(6):
            seg, fs = f // 2, f % 2
            for half in range(2):
                off = (LW[b] - LW[0]) + seg*8192 + sstep*4096 + half*512
                ws.append(f"ds_read_b64_tr_b16 {v(W[p][f]+2*half,2)}, {v(adw[fs])} offset:{off}")
        out = ws[0:2] + xs + ws[2:]
        return out

    def mfmas(p):
        out = []
        for f in range(6):
            for tj in range(4):
                if f < 4:
                    out.append(f"v_mfma_f32_16x16x32_bf16 {v(acc[f][tj],4)}, {v(W[p][f],4)}, {v(X[p][tj],4)}, {v(acc[f][tj],4)}")
                else:
                    out.append(f"v_mfma_f32_16x16x32_bf16 {v(acc[f][tj],4)}, {v(X[p][tj],4)}, {v(W[p][f],4)}, {v(acc[f][tj],4)}")
        return out

    for ln in reads(0, 0, 0): A(ln)
    A(f"s_mov_b32 {s(s_it)}, 0")
    A(".p2align 6")
    A.label(f"L_{name}_loop")
    A(f"s_cmp_eq_u32 {s(s_it)}, 7")
    A(f"s_cselect_b32 {s(SX+2)}, 0, {XSZ}")
    A(f"s_cselect_b32 {s(SW+2)}, 0, {WSZ}")
    for b in range(2):
        A.c(f"---- tile in stage {b}: phase A")
        A("s_waitcnt lgkmcnt(0)")
        for ln in interleave(mfmas(0), reads(1, b, 1)): A(ln)
        A.c("phase B")
        A("s_waitcnt lgkmcnt(0)")
        A("s_waitcnt vmcnt(0)")
        A("s_barrier")
        sec = reads(0, b ^ 1, 0) + dma_items(b)
        for ln in interleave(mfmas(1), sec): A(ln)
    A(f"s_add_u32 {s(s_it)}, {s(s_it)}, 1")
    A(f"s_cmp_lt_u32 {s(s_it)}, 8")
    A(f"s_cbranch_scc1 L_{name}_loop")

    A.c("---- epilogue")
    A("s_waitcnt lgkmcnt(0)")
    A(f"s_mov_b32 {s(s_sc)}, {hex(f32bits(QSCALE))}")
    A(f"s_mov_b32 {s(s_sc+1)}, {hex(f32bits(QSCALE))}")
    A(f"s_lshl_b32 {s(s_t)}, {s(s_mt)}, 3")
    A(f"s_lshl_b32 {s(s_t2)}, {s(s_wm)}, 1")
    A(f"s_add_u32 {s(s_t)}, {s(s_t)}, {s(s_t2)}")
    A(f"s_lshl_b32 {s(s_t2)}, {s(s_br)}, 5")
    A(f"s_add_u32 {s(s_t2)}, {s(s_t2)}, {s(s_head)}")
    A(f"s_lshl_b32 {s(s_q)}, {s(s_t2)}, 6")
    A(f"s_add_u32 {s(s_q)}, {s(s_q)}, {s(s_t)}")
    A(f"s_lshl_b32 {s(s_kv0)}, {s(s_q)}, 12")
    A(f"s_add_u32 {s(s_kv0)}, {s(s_kv0)}, {WS_KVF}")
    A(f"s_add_u32 {s(s_kv1)}, {s(s_kv0)}, 4096")
    A(f"s_lshl_b32 {s(s_q)}, {s(s_q)}, 11")
    if WS_QF: A(f"s_add_u32 {s(s_q)}, {s(s_q)}, {WS_QF}")
    A("s_nop 7")
    P = [X[0][i] for i in range(4)] + [X[1][i] for i in range(4)] + [W[0][i] for i in range(4)]
    Gm = [W[1][i] for i in range(4)]
    for tj in range(4):
        d = P[tj]
        A(f"v_cvt_pk_bf16_f32 {v(d)}, {v(acc[2][tj])}, {v(acc[2][tj]+1)}")
        A(f"v_cvt_pk_bf16_f32 {v(d+1)}, {v(acc[2][tj]+2)}, {v(acc[2][tj]+3)}")
        A(f"v_cvt_pk_bf16_f32 {v(d+2)}, {v(acc[3][tj])}, {v(acc[3][tj]+1)}")
        A(f"v_cvt_pk_bf16_f32 {v(d+3)}, {v(acc[3][tj]+2)}, {v(acc[3][tj]+3)}")
        A(f"buffer_store_dwordx4 {v(d,4)}, {v(vk)}, {s(SWS,4)}, {s(s_kv0 if tj < 2 else s_kv1)} offen offset:{(tj%2)*128}")
    for tj in range(4):
        A(f"v_mfma_f32_16x16x32_bf16 {v(Gm[tj],4)}, {v(P[tj],4)}, {v(P[tj],4)}, 0")
    for u in range(2):
        for fj in range(2):
            d = P[4 + u*2 + fj]
            a0 = acc[4+fj][2*u]; a1 = acc[4+fj][2*u+1]
            A(f"v_cvt_pk_bf16_f32 {v(d)}, {v(a0)}, {v(a0+1)}")
            A(f"v_cvt_pk_bf16_f32 {v(d+1)}, {v(a0+2)}, {v(a0+3)}")
            A(f"v_cvt_pk_bf16_f32 {v(d+2)}, {v(a1)}, {v(a1+1)}")
            A(f"v_cvt_pk_bf16_f32 {v(d+3)}, {v(a1+2)}, {v(a1+3)}")
            A(f"buffer_store_dwordx4 {v(d,4)}, {v(vq)}, {s(SWS,4)}, {s(s_kv0 if u == 0 else s_kv1)} offen offset:{2048 + fj*256}")
    for tj in range(4):
        d = P[8 + tj]
        for f in range(2):
            for h in range(2):
                r = acc[f][tj] + 2*h
                A(f"v_pk_mul_f32 {v(r,2)}, {v(r,2)}, {s(s_sc,2)}")
        A(f"v_cvt_pk_bf16_f32 {v(d)}, {v(acc[0][tj])}, {v(acc[0][tj]+1)}")
        A(f"v_cvt_pk_bf16_f32 {v(d+1)}, {v(acc[0][tj]+2)}, {v(acc[0][tj]+3)}")
        A(f"v_cvt_pk_bf16_f32 {v(d+2)}, {v(acc[1][tj])}, {v(acc[1][tj]+1)}")
        A(f"v_cvt_pk_bf16_f32 {v(d+3)}, {v(acc[1][tj]+2)}, {v(acc[1][tj]+3)}")
        A(f"buffer_store_dwordx4 {v(d,4)}, {v(vq)}, {s(SWS,4)}, {s(s_q)} offen offset:{(tj//2)*2048 + (tj%2)*256}")
    g0 = Gm[0]
    allg = [Gm[i] + r for i in range(4) for r in range(4)]
    A(f"v_max3_f32 {v(t0)}, {v(allg[0])}, {v(allg[1])}, {v(allg[2])}")
    for i in range(3, 15, 2):
        A(f"v_max3_f32 {v(t0)}, {v(t0)}, {v(allg[i])}, {v(allg[i+1])}")
    A(f"v_max_f32 {v(t0)}, {v(t0)}, {v(allg[15])}")
    dpp_reduce(A, "v_max_f32", t0)
    A(f"s_lshl_b32 {s(s_t2)}, {s(s_t2)}, 5")
    A(f"s_lshl_b32 {s(s_t)}, {s(s_mt)}, 2")
    A(f"s_add_u32 {s(s_t2)}, {s(s_t2)}, {s(s_t)}")
    A(f"s_add_u32 {s(s_t2)}, {s(s_t2)}, {s(s_wm)}")
    A(f"s_lshl_b32 {s(s_t2)}, {s(s_t2)}, 2")
    A(f"s_add_u32 {s(s_t2)}, {s(s_t2)}, {WS_KN}")
    A(f"v_mov_b32 {v(t1)}, 0")
    A("s_mov_b32 exec_lo, 0")
    A("s_mov_b32 exec_hi, 0x80000000")
    A(f"buffer_store_dword {v(t0)}, {v(t1)}, {s(SWS,4)}, {s(s_t2)} offen")
    A.label(f"L_{name}_end")
    A("s_endpgm")
    return kernel_header(name) + A.text(), kernel_desc(name, nv), (name, 256, 512, 114688)
```

```python
from asmlib import *

class VmTrack:
    def __init__(self): self.ops = []
    def issue(self, tag): self.ops.append(tag)
    def wait_for(self, tags):
        last = max(i for i, t in enumerate(self.ops) if t in tags)
        n = len(self.ops) - 1 - last
        assert n <= 63
        return n

def gen_gemm3(name="oproj_kernel", ORING=12):
    A = Asm()
    R = RegAlloc(1)
    lane = R.alloc("lane"); t0 = R.alloc("t0"); t1 = R.alloc("t1"); t2 = R.alloc("t2"); t3 = R.alloc("t3")
    voffw = R.alloc("voffw"); vo = [R.alloc("vo0"), R.alloc("vo1")]
    adw = [[R.alloc(f"adw{h}{f}") for f in range(4)] for h in range(2)]
    vst = R.alloc("vst"); vx = R.alloc("vx"); vy = R.alloc("vy")
    Wf = [[R.alloc(f"W{p}{f}", 4) for f in range(4)] for p in range(2)]
    Ob = [[R.alloc(f"O{k}{x}", 4) for x in range(2)] for k in range(ORING)]
    acc = [[R.alloc(f"acc{f}{x}", 4) for x in range(2)] for f in range(4)]
    nv = R.next
    SWS, SW, SO = 16, 20, 24
    s_mt, s_nt, s_w, s_wm, s_kh, s_t, s_t2, s_ob, s_m0, s_t32 = 32, 33, 34, 35, 36, 37, 38, 39, 40, 41
    VM = VmTrack()

    A("s_cmp_ge_u32 s2, 256")
    A(f"s_cbranch_scc1 L_{name}_end")
    A("s_load_dwordx2 s[4:5], s[0:1], 16")
    A("s_load_dwordx2 s[6:7], s[0:1], 40")
    A("s_load_dwordx2 s[8:9], s[0:1], 56")
    A("s_load_dwordx2 s[12:13], s[0:1], 72")
    A(f"v_lshrrev_b32 {v(t0)}, 6, v0")
    A(f"v_and_b32 {v(lane)}, 63, v0")
    A(f"v_readfirstlane_b32 {s(s_w)}, {v(t0)}")
    A(f"s_and_b32 {s(s_t)}, s2, 7")
    A(f"s_lshr_b32 {s(s_t2)}, s2, 3")
    A(f"s_and_b32 {s(s_mt)}, {s(s_t)}, 3")
    A(f"s_lshl_b32 {s(s_mt)}, {s(s_mt)}, 2")
    A(f"s_and_b32 {s(s_nt)}, {s(s_t2)}, 3")
    A(f"s_add_u32 {s(s_mt)}, {s(s_mt)}, {s(s_nt)}")
    A(f"s_lshr_b32 {s(s_nt)}, {s(s_t)}, 2")
    A(f"s_lshl_b32 {s(s_nt)}, {s(s_nt)}, 3")
    A(f"s_lshr_b32 {s(s_t2)}, {s(s_t2)}, 2")
    A(f"s_add_u32 {s(s_nt)}, {s(s_nt)}, {s(s_t2)}")
    A(f"s_and_b32 {s(s_wm)}, {s(s_w)}, 3")
    A(f"s_lshr_b32 {s(s_kh)}, {s(s_w)}, 2")
    A(f"s_lshl_b32 {s(s_t32)}, {s(s_mt)}, 2")
    A(f"s_add_u32 {s(s_t32)}, {s(s_t32)}, {s(s_wm)}")
    A(f"s_lshl_b32 {s(s_ob)}, {s(s_t32)}, 17")
    A(f"s_lshl_b32 {s(s_t)}, {s(s_kh)}, 16")
    A(f"s_add_u32 {s(s_ob)}, {s(s_ob)}, {s(s_t)}")
    A(f"s_add_u32 {s(s_ob)}, {s(s_ob)}, {WS_OF}")
    A(f"s_lshl_b32 {s(s_m0)}, {s(s_w)}, 12")
    A(f"v_lshrrev_b32 {v(t0)}, 3, {v(lane)}")
    A(f"v_and_b32 {v(t1)}, 7, {v(lane)}")
    A(f"v_and_b32 {v(t2)}, 6, {v(t0)}")
    A(f"v_xor_b32 {v(t1)}, {v(t1)}, {v(t2)}")
    A(f"s_lshl_b32 {s(s_t)}, {s(s_wm)}, 5")
    A(f"v_add_u32 {v(voffw)}, {s(s_t)}, {v(t0)}")
    A(f"v_lshlrev_b32 {v(voffw)}, 11, {v(voffw)}")
    A(f"v_lshl_add_u32 {v(voffw)}, {v(t1)}, 4, {v(voffw)}")
    A(f"s_lshl_b32 {s(s_t)}, {s(s_nt)}, 7")
    A(f"v_add_u32 {v(voffw)}, {s(s_t)}, {v(voffw)}")
    A(f"s_lshl_b32 {s(s_t)}, {s(s_kh)}, 10")
    A(f"v_lshlrev_b32 {v(t0)}, 4, {v(lane)}")
    A(f"v_add_u32 {v(vo[0])}, {s(s_t)}, {v(t0)}")
    A(f"v_xor_b32 {v(vo[1])}, 1024, {v(vo[0])}")
    A("s_waitcnt lgkmcnt(0)")
    A(f"s_mov_b32 {s(SWS)}, s12")
    A(f"s_mov_b32 {s(SWS+1)}, s13")
    A(f"s_mov_b32 {s(SWS+2)}, {WS_END}")
    A(f"s_mov_b32 {s(SWS+3)}, 0x00020000")
    A(f"s_cmp_eq_u32 {s(s_kh)}, 0")
    A(f"s_cselect_b32 {s(SW)}, s4, s6")
    A(f"s_cselect_b32 {s(SW+1)}, s5, s7")
    A(f"s_mov_b32 {s(SW+2)}, {1024*2048}")
    A(f"s_mov_b32 {s(SW+3)}, 0x00020000")
    A(f"s_mov_b32 {s(SO)}, s8")
    A(f"s_mov_b32 {s(SO+1)}, s9")
    A(f"s_mov_b32 {s(SO+2)}, {2048*2048}")
    A(f"s_mov_b32 {s(SO+3)}, 0x00020000")

    def dma(st):
        items = []
        for i in range(4):
            items.append(("D", st, [f"s_add_u32 m0, {s(s_m0)}, {(st % 4)*32768 + i*1024}",
                          f"s_mov_b32 {s(s_t)}, {(st*128 + i*8)*2048}",
                          f"buffer_load_dwordx4 {v(voffw)}, {s(SW,4)}, {s(s_t)} offen lds"]))
        return items
    def oload(n):
        items = []
        for x in range(2):
            pre = [f"s_add_u32 {s(s_t2)}, {s(s_ob)}, {n*2048}"] if x == 0 else []
            items.append(("O", n, pre + [f"buffer_load_dwordx4 {v(Ob[n % ORING][x],4)}, {v(vo[x])}, {s(SWS,4)}, {s(s_t2)} offen"]))
        return items
    def emit_items(items):
        for kind, idx, lns in items:
            for ln in lns: A(ln)
            VM.issue((kind, idx))

    for st in range(4):
        emit_items(dma(st))
        if st < 3:
            for n in range(4*st, 4*st + 4):
                if n < ORING: emit_items(oload(n))

    A.c("LDS read addresses")
    A(f"v_lshrrev_b32 {v(t0)}, 4, {v(lane)}")
    A(f"v_lshrrev_b32 {v(t1)}, 2, {v(lane)}")
    A(f"v_and_b32 {v(t1)}, 3, {v(t1)}")
    A(f"v_lshrrev_b32 {v(t2)}, 1, {v(t0)}")
    A(f"v_lshlrev_b32 {v(t2)}, 4, {v(t2)}")
    A(f"v_and_b32 {v(t3)}, 1, {v(t0)}")
    A(f"v_lshl_add_u32 {v(t2)}, {v(t3)}, 2, {v(t2)}")
    A(f"v_add_u32 {v(t2)}, {v(t2)}, {v(t1)}")
    a0 = adw[0][0]
    A(f"v_lshlrev_b32 {v(a0)}, 7, {v(t2)}")
    A(f"v_lshrrev_b32 {v(t2)}, 1, {v(t2)}")
    A(f"v_and_b32 {v(t2)}, 3, {v(t2)}")
    A(f"v_lshl_add_u32 {v(a0)}, {v(t2)}, 5, {v(a0)}")
    A(f"v_and_b32 {v(t2)}, 3, {v(lane)}")
    A(f"v_lshl_add_u32 {v(a0)}, {v(t2)}, 3, {v(a0)}")
    A(f"s_lshl_b32 {s(s_t)}, {s(s_kh)}, 14")
    A(f"v_add_u32 {v(a0)}, {s(s_t)}, {v(a0)}")
    for f in range(1, 4): A(f"v_xor_b32 {v(adw[0][f])}, {f*32}, {v(a0)}")
    for f in range(4): A(f"v_add_u32 {v(adw[1][f])}, 65536, {v(adw[0][f])}")
    A(f"v_lshlrev_b32 {v(t2)}, 4, {v(lane)}")
    A(f"v_add_u32 {v(vx)}, {s(s_m0)}, {v(t2)}")
    A(f"v_xor_b32 {v(vy)}, 16384, {v(vx)}")
    A(f"s_lshl_b32 {s(s_t)}, {s(s_t32)}, 5")
    A(f"s_lshl_b32 {s(s_t2)}, {s(s_kh)}, 4")
    A(f"s_add_u32 {s(s_t)}, {s(s_t)}, {s(s_t2)}")
    A(f"v_and_b32 {v(t2)}, 15, {v(lane)}")
    A(f"v_add_u32 {v(vst)}, {s(s_t)}, {v(t2)}")
    A(f"v_lshlrev_b32 {v(vst)}, 11, {v(vst)}")
    A(f"v_lshl_add_u32 {v(vst)}, {v(t3)}, 5, {v(vst)}")
    A(f"v_lshrrev_b32 {v(t2)}, 1, {v(t0)}")
    A(f"v_lshl_add_u32 {v(vst)}, {v(t2)}, 4, {v(vst)}")
    A(f"s_lshl_b32 {s(s_t)}, {s(s_nt)}, 7")
    A(f"v_add_u32 {v(vst)}, {s(s_t)}, {v(vst)}")
    for f in range(4):
        for x in range(2):
            for r in range(4): A(f"v_mov_b32 {v(acc[f][x]+r)}, 0")

    def reads(n):
        st, k = n // 4, n % 4
        slot = st % 4
        out = []
        for f in range(4):
            for half in range(2):
                off = (slot % 2)*32768 + k*4096 + half*1024
                out.append(f"ds_read_b64_tr_b16 {v(Wf[n%2][f]+2*half,2)}, {v(adw[slot//2][f])} offset:{off}")
        return out
    def mfmas(n):
        return [f"v_mfma_f32_16x16x32_bf16 {v(acc[f][x],4)}, {v(Wf[n%2][f],4)}, {v(Ob[n%ORING][x],4)}, {v(acc[f][x],4)}"
                for f in range(4) for x in range(2)]

    A(f"s_waitcnt vmcnt({VM.wait_for([('D', 0)])})")
    A("s_barrier")
    for ln in reads(0): A(ln)
    for n in range(32):
        A.c(f"k-step {n}")
        vm_items = []
        need = [("O", n)]
        sync = (n % 4 == 3 and n + 1 < 32)
        if sync: need.append(("D", (n + 1) // 4))
        A(f"s_waitcnt vmcnt({VM.wait_for(need)}) lgkmcnt(0)")
        if sync:
            A("s_barrier")
            st = n // 4
            if st + 4 < 8: vm_items += dma(st + 4)
        if n >= 1 and n - 1 + ORING < 32: vm_items = oload(n - 1 + ORING) + vm_items
        sec = (reads(n + 1) if n + 1 < 32 else [])
        mf = mfmas(n)
        for i, m in enumerate(mf):
            A(m)
            if i < len(sec): A(sec[i])
            if vm_items:
                emit_items([vm_items.pop(0)])
        emit_items(vm_items)
    A.c("exchange")
    A("s_nop 7")
    for f in range(4):
        A(f"ds_write_b128 {v(vx)}, {v(acc[f][1],4)} offset:{f*1024}")
    A("s_waitcnt lgkmcnt(0)")
    A("s_barrier")
    rv = [Wf[0][f] for f in range(4)]
    for f in range(4):
        A(f"ds_read_b128 {v(rv[f],4)}, {v(vy)} offset:{f*1024}")
    pk = [Wf[1][0], Wf[1][1]]
    for pr in range(2):
        d = pk[pr]
        for ff in range(2):
            f = 2*pr + ff
            A(f"s_waitcnt lgkmcnt({3 - f})")
            for r in range(4):
                A(f"v_add_f32 {v(acc[f][0]+r)}, {v(acc[f][0]+r)}, {v(rv[f]+r)}")
            A(f"v_cvt_pk_bf16_f32 {v(d+2*ff)}, {v(acc[f][0])}, {v(acc[f][0]+1)}")
            A(f"v_cvt_pk_bf16_f32 {v(d+2*ff+1)}, {v(acc[f][0]+2)}, {v(acc[f][0]+3)}")
        A("s_nop 1")
        A(f"v_permlane16_swap_b32 {v(d)}, {v(d+2)}")
        A(f"v_permlane16_swap_b32 {v(d+1)}, {v(d+3)}")
        A("s_nop 1")
        A(f"buffer_store_dwordx4 {v(d,4)}, {v(vst)}, {s(SO,4)}, 0 offen offset:{pr*64}")
    A.label(f"L_{name}_end")
    A("s_endpgm")
    return kernel_header(name) + A.text(), kernel_desc(name, nv), (name, 256, 512, 131072)
```

```python
import sys, importlib
from asmlib import *
import gemm1
OUT = "gated_mix__sliding_block__mha_block__prompt.s"
HEAD = open("gated_mix__sliding_block__mha_block__prompt.s.ref").read().split("; Override launch")[0]

def build(kernels, out=OUT):
    txt = HEAD
    for code, desc, (name, grid, block, lds) in kernels:
        txt += f"; @launch kernel={name} grid=({grid},1,1) block=({block},1,1) lds={lds}\n"
    txt += '.amdgcn_target "amdgcn-amd-amdhsa--gfx950"\n.text\n'
    for code, desc, _ in kernels:
        txt += code
    txt += '.section .rodata,"a"\n'
    for code, desc, _ in kernels:
        txt += desc
    open(out, "w").write(txt)

if __name__ == "__main__":
    ks = [gemm1.gen_gemm1()]
    try:
        import attn
        ks.append(attn.gen_attn())
        import gemm3
        ks.append(gemm3.gen_gemm3())
    except ImportError as e:
        print("partial build", e)
    build(ks, sys.argv[1] if len(sys.argv) > 1 else OUT)
```

```python
class Asm:
    def __init__(self):
        self.lines = []
    def __call__(self, s):
        for ln in s.strip("\n").split("\n"):
            self.lines.append("    " + ln.strip() if not ln.strip().endswith(":") and not ln.strip().startswith(".") else ln.strip())
    def c(self, s):
        self.lines.append("    ; " + s)
    def label(self, s):
        self.lines.append(s + ":")
    def text(self):
        return "\n".join(self.lines) + "\n"

def v(r, n=1):
    return f"v{r}" if n == 1 else f"v[{r}:{r+n-1}]"
def a(r, n=1):
    return f"a{r}" if n == 1 else f"a[{r}:{r+n-1}]"
def s(r, n=1):
    return f"s{r}" if n == 1 else f"s[{r}:{r+n-1}]"

class RegAlloc:
    def __init__(self, start=0, limit=256):
        self.next = start; self.limit = limit; self.names = {}
    def alloc(self, name, n=1, align=None):
        if align is None:
            align = 1 if n == 1 else (2 if n == 2 else 4)
        r = (self.next + align - 1) // align * align
        self.next = r + n
        assert self.next <= self.limit, f"out of regs at {name}"
        self.names[name] = r
        return r

def interleave(primary, secondary, start=0, per=1):
    out = []
    sec = list(secondary)
    for i, p in enumerate(primary):
        out.append(p)
        if i >= start:
            for _ in range(per):
                if sec:
                    x = sec.pop(0)
                    out.extend(x if isinstance(x, list) else [x])
    for x in sec:
        out.extend(x if isinstance(x, list) else [x])
    return out

def kernel_header(name):
    return f""".globl {name}
.p2align 8
.type {name},@function
{name}:
"""

def kernel_desc(name, nvgpr, nsgpr=102, accum=None):
    if accum is None:
        accum = (nvgpr + 3) // 4 * 4
    return f""".p2align 6
.amdhsa_kernel {name}
  .amdhsa_next_free_vgpr {nvgpr}
  .amdhsa_next_free_sgpr {nsgpr}
  .amdhsa_accum_offset {accum}
  .amdhsa_group_segment_fixed_size 0
  .amdhsa_kernarg_size 80
  .amdhsa_user_sgpr_count 2
  .amdhsa_user_sgpr_kernarg_segment_ptr 1
  .amdhsa_system_sgpr_workgroup_id_x 1
.end_amdhsa_kernel
"""

WS_QF = 0
WS_KVF = 8 << 20
WS_OF = 24 << 20
WS_KN = 32 << 20
WS_G = (32 << 20) + 65536
WS_WF = 33 << 20
WS_END = 37 << 20

import os
STAMPS = bool(int(os.environ.get("STAMPS", "0")))
WS_STAMP = 40 << 20
class Stamper:
    def __init__(self, A, kidx, base=68, n=8):
        self.A = A; self.k = kidx; self.base = base; self.n = 0; self.max = n
    def stamp(self):
        if not STAMPS: return
        assert self.n < self.max
        b = self.base + 4 * self.n
        self.A(f"s_memtime s[{b}:{b+1}]")
        self.A(f"s_memrealtime s[{b+2}:{b+3}]")
        self.n += 1
    def flush(self, s_ws_lo, s_ws_hi, s_wave, vt0, vt1, vt2):
        if not STAMPS: return
        A = self.A
        A("s_waitcnt lgkmcnt(0) vmcnt(0)")
        self.stamp()
        A("s_waitcnt lgkmcnt(0)")
        A(f"s_mov_b32 s4, s{s_ws_lo}")
        A(f"s_mov_b32 s5, s{s_ws_hi}")
        A(f"s_mov_b32 s6, {WS_STAMP + (4 << 20)}")
        A("s_mov_b32 s7, 0x00020000")
        A(f"s_lshl_b32 s8, s2, 3")
        A(f"s_add_u32 s8, s8, s{s_wave}")
        A(f"s_lshl_b32 s8, s8, 7")
        A(f"s_add_u32 s8, s8, {WS_STAMP + self.k * 256 * 8 * 128}")
        A("s_mov_b64 exec, 1")
        A(f"v_mov_b32 v{vt2}, 0")
        for i in range(self.n):
            b = self.base + 4 * i
            A(f"v_mov_b32 v{vt0}, s{b}")
            A(f"v_mov_b32 v{vt1}, s{b+2}")
            A(f"buffer_store_dword v{vt0}, v{vt2}, s[4:7], s8 offen offset:{8*i}")
            A(f"buffer_store_dword v{vt1}, v{vt2}, s[4:7], s8 offen offset:{8*i+4}")
            A("s_nop 1")
```

```python
from asmlib import *
from gemm1 import f32bits, dpp_reduce
import math

NEG = f32bits(-1e30)
THR = f32bits(2.0 ** -40)

def krow(r):
    return 16 * ((r >> 2) & 1) + 8 * (r >> 3) + (r & 3)

def gen_attn(name="attn_kernel", store_aux="sc1", prio={5: 3, 7: 2, 1: 1, 3: 0}):
    A = Asm()
    R = RegAlloc(1)
    lane = R.alloc("lane"); t0 = R.alloc("t0"); t1 = R.alloc("t1"); t2 = R.alloc("t2"); t3 = R.alloc("t3")
    vl16 = R.alloc("vl16"); vcur = R.alloc("vcur"); vnxt = R.alloc("vnxt"); vost = R.alloc("vost")
    vqh = R.alloc("vqh")
    vneg = R.alloc("vneg")
    vl4 = R.alloc("vl4")
    nmb = [R.alloc("nmbA"), R.alloc("nmbB")]
    gf = [R.alloc("gA"), R.alloc("gB")]
    kn = [R.alloc("knA"), R.alloc("knB")]
    vbase = R.alloc("vbase")
    vwo = R.alloc("vwo"); vwr = R.alloc("vwr")
    Q = [R.alloc("QA", 8), R.alloc("QB", 8)]
    Kb = [R.alloc("K0", 8), R.alloc("K1", 8)]
    Vb = [R.alloc("V0", 8), R.alloc("V1", 8)]
    P = [R.alloc("P0", 8), R.alloc("P1", 8)]
    ones = R.alloc("ones", 4); L = R.alloc("L", 4); vidx = R.alloc("vidx")
    MU = R.alloc("MU", 16)
    S = [R.alloc("S0", 16), R.alloc("S1", 16)]
    O = R.alloc("O", 16); Cb = R.alloc("Cb", 16); Cm = R.alloc("Cm", 16)
    nv = R.next
    SWS, SD, SWO = 16, 20, 24
    s_head, s_qb, s_w, s_t, s_t2, s_tr, s_st, s_src, s_m0w, s_i = 32, 33, 34, 35, 36, 37, 38, 39, 40, 41
    s_kvA, s_kvB, s_oA, s_oB, s_slot, s_k2 = 42, 43, 44, 45, 46, 47
    s_ft, s_fe, s_fa, s_alo, s_ahi, s_wf = 48, 49, 50, 51, 52, 53
    SM = [60, 62, 64, 66]
    LWO = 131072

    A("s_cmp_ge_u32 s2, 256")
    A(f"s_cbranch_scc1 L_{name}_end")
    ST = Stamper(A, 1)
    ST.stamp()
    A("s_load_dwordx2 s[12:13], s[0:1], 72")
    A("s_load_dwordx2 s[4:5], s[0:1], 16")
    A("s_load_dwordx2 s[6:7], s[0:1], 40")
    A(f"v_lshrrev_b32 {v(t0)}, 6, v0")
    A(f"v_and_b32 {v(lane)}, 63, v0")
    A(f"v_readfirstlane_b32 {s(s_w)}, {v(t0)}")
    A(f"s_and_b32 {s(s_t)}, s2, 7")
    A(f"s_lshr_b32 {s(s_t2)}, s2, 3")
    A(f"s_lshl_b32 {s(s_head)}, {s(s_t)}, 2")
    A(f"s_and_b32 {s(s_t)}, {s(s_t2)}, 3")
    A(f"s_add_u32 {s(s_head)}, {s(s_head)}, {s(s_t)}")
    A(f"s_lshr_b32 {s(s_qb)}, {s(s_t2)}, 2")
    A(f"s_lshl_b32 {s(s_i)}, {s(s_qb)}, 3")
    A(f"s_add_u32 {s(s_i)}, {s(s_i)}, {s(s_w)}")
    A(f"v_lshlrev_b32 {v(vl16)}, 4, {v(lane)}")
    A(f"s_lshl_b32 {s(s_m0w)}, {s(s_w)}, 12")
    A(f"s_lshl_b32 {s(s_kvA)}, {s(s_head)}, 18")
    A(f"s_add_u32 {s(s_kvA)}, {s(s_kvA)}, {WS_KVF}")
    A(f"s_add_u32 {s(s_kvB)}, {s(s_kvA)}, {8 << 20}")
    A(f"s_add_u32 {s(s_src)}, {s(s_kvB)}, {s(s_m0w)}")
    A(f"v_and_b32 {v(t0)}, 31, {v(lane)}")
    A(f"v_lshlrev_b32 {v(vl4)}, 2, {v(t0)}")
    A(f"s_lshl_b32 {s(s_oA)}, {s(s_head)}, 6")
    A(f"s_add_u32 {s(s_oA)}, {s(s_oA)}, {s(s_i)}")
    A(f"s_lshl_b32 {s(s_oA)}, {s(s_oA)}, 11")
    A(f"s_add_u32 {s(s_t2)}, {s(s_oA)}, {WS_QF + (4 << 20)}")
    A(f"s_lshl_b32 {s(s_t)}, {s(s_head)}, 7")
    A(f"s_add_u32 {s(s_t)}, {s(s_t)}, {WS_KN + 4096}")
    for b in (SWS, SD):
        A(f"s_mov_b32 {s(b+2)}, {WS_END}")
        A(f"s_mov_b32 {s(b+3)}, 0x00020000")
    A("s_waitcnt lgkmcnt(0)")
    for b in (SWS, SD):
        A(f"s_mov_b32 {s(b)}, s12")
        A(f"s_mov_b32 {s(b+1)}, s13")

    def dma(slot_expr_m0, src_sgpr):
        out = [slot_expr_m0, "s_nop 0"]
        for i in range(4):
            out.append(f"buffer_load_dwordx4 {v(vl16)}, {s(SD,4)}, {s(src_sgpr)} offen offset:{i*1024} lds")
        return out
    A.c("first loads: Q_B, KN_B, stage 0")
    A(f"buffer_load_dwordx4 {v(Q[1],4)}, {v(vl16)}, {s(SWS,4)}, {s(s_t2)} offen")
    A(f"buffer_load_dwordx4 {v(Q[1]+4,4)}, {v(vl16)}, {s(SWS,4)}, {s(s_t2)} offen offset:1024")
    A(f"buffer_load_dword {v(kn[1])}, {v(vl4)}, {s(SWS,4)}, {s(s_t)} offen")
    for ln in dma(f"s_mov_b32 m0, {s(s_m0w)}", s_src): A(ln)
    A(f"s_add_u32 {s(s_src)}, {s(s_src)}, 32768")
    A.c("lane constants")
    A(f"v_lshrrev_b32 {v(t1)}, 5, {v(lane)}")
    A(f"v_lshlrev_b32 {v(t2)}, 2, {v(t1)}")
    A(f"v_sub_u32 {v(vqh)}, {v(t0)}, {v(t2)}")
    A(f"v_mov_b32 {v(vneg)}, {hex(NEG)}")
    A(f"v_lshrrev_b32 {v(t2)}, 4, {v(t0)}")
    A(f"v_lshlrev_b32 {v(vost)}, 10, {v(t2)}")
    A(f"v_lshl_add_u32 {v(vost)}, {v(t1)}, 8, {v(vost)}")
    A(f"v_and_b32 {v(t2)}, 15, {v(lane)}")
    A(f"v_lshl_add_u32 {v(vost)}, {v(t2)}, 4, {v(vost)}")
    A(f"v_lshrrev_b32 {v(t3)}, 2, {v(lane)}")
    A(f"v_and_b32 {v(t2)}, 1, {v(t3)}")
    A(f"v_sub_u32 {v(t2)}, {v(t2)}, 1")
    A(f"v_and_b32 {v(ones)}, 0x3f803f80, {v(t2)}")
    A(f"v_mov_b32 {v(ones+1)}, {v(ones)}")
    A(f"v_xor_b32 {v(ones+2)}, 0x3f803f80, {v(ones)}")
    A(f"v_mov_b32 {v(ones+3)}, {v(ones+2)}")
    A(f"v_and_b32 {v(t2)}, 1, {v(lane)}")
    A(f"v_sub_u32 {v(t2)}, 0, {v(t2)}")
    A(f"v_and_b32 {v(t2)}, 0xaaaaaaaa, {v(t2)}")
    A(f"v_xor_b32 {v(vidx)}, 0x44444444, {v(t2)}")
    for r in range(16): A(f"v_mov_b32 {v(O+r)}, 0")
    for r in range(4): A(f"v_mov_b32 {v(L+r)}, 0")
    A(f"v_mov_b32 {v(vcur)}, {v(vl16)}")
    A(f"v_add_u32 {v(vnxt)}, 32768, {v(vl16)}")
    A(f"s_movk_i32 {s(s_fa)}, 256")
    A(f"s_max_u32 {s(s_t)}, {s(s_qb)}, 1")
    A(f"s_sub_u32 {s(s_t)}, {s(s_t)}, 1")
    A(f"s_lshl_b32 {s(s_t)}, {s(s_t)}, 15")
    A(f"s_add_u32 {s(s_alo)}, {s(s_t)}, {s(s_kvA)}")
    A(f"s_add_u32 {s(s_alo)}, {s(s_alo)}, {s(s_m0w)}")
    A(f"s_lshl_b32 {s(s_t)}, {s(s_qb)}, 15")
    A(f"s_add_u32 {s(s_ahi)}, {s(s_t)}, {s(s_kvA)}")
    A(f"s_add_u32 {s(s_ahi)}, {s(s_ahi)}, {s(s_m0w)}")
    A.c("wo re-tile job: br = wg>>7, nt = (wg>>3)&15, st = wg&7 ; wave w copies rows 16w..16w+15 of the 128x128B tile")
    A(f"s_cmp_lt_u32 s2, 128")
    A(f"s_cselect_b32 {s(SWO)}, s4, s6")
    A(f"s_cselect_b32 {s(SWO+1)}, s5, s7")
    A(f"s_mov_b32 {s(SWO+2)}, {1024*2048}")
    A(f"s_mov_b32 {s(SWO+3)}, 0x00020000")
    A(f"v_lshrrev_b32 {v(t2)}, 3, {v(lane)}")
    A(f"v_and_b32 {v(t3)}, 7, {v(lane)}")
    A(f"v_and_b32 {v(vwo)}, 6, {v(t2)}")
    A(f"v_xor_b32 {v(t3)}, {v(t3)}, {v(vwo)}")
    A(f"s_and_b32 {s(s_t)}, s2, 7")
    A(f"s_lshl_b32 {s(s_t)}, {s(s_t)}, 7")
    A(f"s_lshl_b32 {s(s_t2)}, {s(s_w)}, 4")
    A(f"s_add_u32 {s(s_t)}, {s(s_t)}, {s(s_t2)}")
    A(f"v_add_u32 {v(vwo)}, {s(s_t)}, {v(t2)}")
    A(f"v_lshlrev_b32 {v(vwo)}, 11, {v(vwo)}")
    A(f"v_lshl_add_u32 {v(vwo)}, {v(t3)}, 4, {v(vwo)}")
    A(f"s_lshr_b32 {s(s_t)}, s2, 3")
    A(f"s_and_b32 {s(s_t)}, {s(s_t)}, 15")
    A(f"s_lshl_b32 {s(s_t)}, {s(s_t)}, 7")
    A(f"v_add_u32 {v(vwo)}, {s(s_t)}, {v(vwo)}")
    A(f"v_lshrrev_b32 {v(t1)}, 4, {v(lane)}")
    A(f"v_lshrrev_b32 {v(t2)}, 1, {v(t1)}")
    A(f"v_lshlrev_b32 {v(t2)}, 4, {v(t2)}")
    A(f"v_and_b32 {v(t3)}, 1, {v(t1)}")
    A(f"v_lshl_add_u32 {v(t2)}, {v(t3)}, 2, {v(t2)}")
    A(f"v_lshrrev_b32 {v(t3)}, 2, {v(lane)}")
    A(f"v_and_b32 {v(t3)}, 3, {v(t3)}")
    A(f"v_add_u32 {v(t2)}, {v(t2)}, {v(t3)}")
    A(f"v_lshlrev_b32 {v(vwr)}, 7, {v(t2)}")
    A(f"v_lshrrev_b32 {v(t2)}, 1, {v(t2)}")
    A(f"v_and_b32 {v(t2)}, 3, {v(t2)}")
    A(f"s_and_b32 {s(s_t)}, {s(s_w)}, 1")
    A(f"s_lshl_b32 {s(s_t)}, {s(s_t)}, 1")
    A(f"v_xor_b32 {v(t2)}, {s(s_t)}, {v(t2)}")
    A(f"v_lshl_add_u32 {v(vwr)}, {v(t2)}, 5, {v(vwr)}")
    A(f"v_and_b32 {v(t2)}, 3, {v(lane)}")
    A(f"v_lshl_add_u32 {v(vwr)}, {v(t2)}, 3, {v(vwr)}")
    A(f"s_lshr_b32 {s(s_t)}, {s(s_w)}, 1")
    A(f"s_lshl_b32 {s(s_t)}, {s(s_t)}, 12")
    A(f"s_add_u32 {s(s_t)}, {s(s_t)}, {LWO}")
    A(f"v_add_u32 {v(vwr)}, {s(s_t)}, {v(vwr)}")
    A(f"s_lshl_b32 {s(s_wf)}, s2, 14")
    A(f"s_lshl_b32 {s(s_t)}, {s(s_w)}, 11")
    A(f"s_add_u32 {s(s_wf)}, {s(s_wf)}, {s(s_t)}")
    A(f"s_add_u32 {s(s_wf)}, {s(s_wf)}, {WS_WF}")

    def bound(br):
        A(f"v_mov_b32 {v(t2)}, 0")
        A("s_nop 0")
        for r in range(8):
            A(f"v_dot2_f32_bf16 {v(t2)}, {v(Q[br]+r)}, {v(Q[br]+r)}, {v(t2)}")
        dpp_reduce(A, "v_max_f32", kn[br])
        A(f"v_mov_b32 {v(t3)}, {v(t2)}")
        A("s_nop 1")
        A(f"v_permlane32_swap_b32 {v(t2)}, {v(t3)}")
        A(f"v_readlane_b32 {s(s_k2)}, {v(kn[br])}, 63")
        A("s_nop 0")
        A(f"v_add_f32 {v(t2)}, {v(t2)}, {v(t3)}")
        A("s_nop 0")
        A(f"v_mul_f32 {v(t2)}, {s(s_k2)}, {v(t2)}")
        A(f"v_sqrt_f32 {v(t2)}, {v(t2)}")
        A("s_nop 0")
        A(f"v_sub_f32 {v(nmb[br])}, 0, {v(t2)}")

    def mask_block(dst, base, vd):
        for r0 in range(0, 16, 4):
            for k in range(4):
                r = r0 + k
                A(f"v_subrev_u32 {v(dst+r)}, {krow(r)}, {v(vd)}")
            for k in range(4):
                r = r0 + k
                A(f"v_cmp_gt_u32 {s(SM[k],2)}, {s(s_fa)}, {v(dst+r)}")
            A("s_nop 1")
            for k in range(4):
                r = r0 + k
                A(f"v_cndmask_b32 {v(dst+r)}, {v(vneg)}, {v(base)}, {s(SM[k],2)}")

    A(f"v_mov_b32 {v(vbase)}, 0")
    A(f"v_add_u32 {v(t2)}, {s(s_fa)}, {v(vqh)}")
    mask_block(MU, vbase, t2)
    A("s_waitcnt vmcnt(4)")
    bound(1)
    for r in range(16): A(f"v_mov_b32 {v(Cb+r)}, {v(nmb[1])}")
    A("s_waitcnt vmcnt(0)")
    A("s_barrier")
    ST.stamp()
    if STAMPS: A("s_waitcnt lgkmcnt(0)")

    def rdK(j, addr, off):
        b = Kb[j % 2]
        return [f"ds_read_b128 {v(b,4)}, {v(addr)} offset:{off}", f"ds_read_b128 {v(b+4,4)}, {v(addr)} offset:{off+1024}"]
    def rdV(j, addr, off):
        b = Vb[j % 2]
        return [f"ds_read_b128 {v(b,4)}, {v(addr)} offset:{off+2048}", f"ds_read_b128 {v(b+4,4)}, {v(addr)} offset:{off+3072}"]
    def qk(j, q, C):
        d = S[j % 2]; k = Kb[j % 2]
        return [f"v_mfma_f32_32x32x16_bf16 {v(d,16)}, {v(k,4)}, {v(q,4)}, {v(C,16)}",
                f"v_mfma_f32_32x32x16_bf16 {v(d,16)}, {v(k+4,4)}, {v(q+4,4)}, {v(d,16)}"]
    def pv(j):
        p = P[j % 2]; vv = Vb[j % 2]
        return [f"v_mfma_f32_32x32x16_bf16 {v(O,16)}, {v(vv,4)}, {v(p,4)}, {v(O,16)}",
                f"v_mfma_f32_32x32x16_bf16 {v(O,16)}, {v(vv+4,4)}, {v(p+4,4)}, {v(O,16)}",
                f"v_smfmac_f32_16x16x64_bf16 {v(L,4)}, {v(ones,4)}, {v(p,8)}, {v(vidx)}"]
    def ex(j, r): return f"v_exp_f32 {v(S[j%2]+r)}, {v(S[j%2]+r)}"
    def cv(j, k): return f"v_cvt_pk_bf16_f32 {v(P[j%2]+k)}, {v(S[j%2]+2*k)}, {v(S[j%2]+2*k+1)}"

    def iteration(j, QK, PV, RK, RV, wait, extra=None):
        out = []
        if wait is not None: out.append(f"s_waitcnt lgkmcnt({wait})")
        e = [ex(j, r) for r in range(16)]; c = [cv(j, k) for k in range(8)]
        QK = QK or [None, None]; PV = PV or [None] * 3
        seq = [QK[0], e[0], e[1], e[2], QK[1], e[3], e[4], e[5]] + list(RK) + \
              [PV[0], e[6], e[7], c[0], c[1], PV[1], e[8], e[9], c[2], c[3]] + list(RV) + (extra or []) + \
              [PV[2], e[10], e[11], e[12], e[13], e[14], e[15], c[4], c[5], c[6], c[7]]
        out += [x for x in seq if x is not None]
        return out

    def epilogue(br, so, lbl):
        A("s_nop 15")
        A("s_nop 3")
        A(f"s_mov_b32 {s(s_t)}, {hex(THR)}")
        A(f"v_add_f32 {v(L)}, {v(L)}, {v(L+1)}")
        A(f"v_cmp_le_f32 vcc, {s(s_t)}, {v(L)}")
        A("s_nop 3")
        A("s_cmp_eq_u64 vcc, exec")
        A(f"s_cbranch_scc0 L_{name}_fb{lbl}")
        A.label(f"L_{name}_st{lbl}")
        A(f"v_rcp_f32 {v(t2)}, {v(L)}")
        A("s_nop 0")
        A(f"v_mul_f32 {v(t2)}, {v(gf[br])}, {v(t2)}")
        for r in range(16): A(f"v_mul_f32 {v(O+r)}, {v(t2)}, {v(O+r)}")
        d = S[0]
        for k in range(8): A(f"v_cvt_pk_bf16_f32 {v(d+k)}, {v(O+2*k)}, {v(O+2*k+1)}")
        A(f"buffer_store_dwordx4 {v(d,4)}, {v(vost)}, {s(SWS,4)}, {s(so)} offen {store_aux}")
        A(f"buffer_store_dwordx4 {v(d+4,4)}, {v(vost)}, {s(SWS,4)}, {s(so)} offen offset:512 {store_aux}")

    for ln in rdK(0, vcur, 0) + rdK(1, vcur, 4096) + rdV(0, vcur, 0): A(ln)
    A("s_waitcnt lgkmcnt(4)")
    for ln in qk(0, Q[1], Cb): A(ln)
    for ln in rdK(2, vcur, 8192): A(ln)
    first = {
        0: dma(f"s_add_u32 m0, {s(s_m0w)}, 32768", s_src) + [f"s_add_u32 {s(s_src)}, {s(s_src)}, 32768"],
        1: [f"s_add_u32 {s(s_t)}, {s(s_oA)}, {WS_QF}",
            f"buffer_load_dwordx4 {v(Q[0],4)}, {v(vl16)}, {s(SWS,4)}, {s(s_t)} offen",
            f"buffer_load_dwordx4 {v(Q[0]+4,4)}, {v(vl16)}, {s(SWS,4)}, {s(s_t)} offen offset:1024",
            f"s_lshl_b32 {s(s_t)}, {s(s_head)}, 7",
            f"s_add_u32 {s(s_t)}, {s(s_t)}, {WS_KN}",
            f"buffer_load_dword {v(kn[0])}, {v(vl4)}, {s(SWS,4)}, {s(s_t)} offen",
            f"s_lshl_b32 {s(s_t)}, {s(s_i)}, 7",
            f"s_add_u32 {s(s_t)}, {s(s_t)}, {WS_G}",
            f"s_add_u32 {s(s_t2)}, {s(s_t)}, 8192",
            f"buffer_load_dword {v(gf[0])}, {v(vl4)}, {s(SWS,4)}, {s(s_t)} offen",
            f"buffer_load_dword {v(gf[1])}, {v(vl4)}, {s(SWS,4)}, {s(s_t2)} offen"],
        2: dma(f"s_add_u32 m0, {s(s_m0w)}, 65536", s_src) + [f"s_add_u32 {s(s_src)}, {s(s_src)}, 32768",
            f"s_add_u32 {s(s_oA)}, {s(s_oA)}, {WS_OF}", f"s_add_u32 {s(s_oB)}, {s(s_oA)}, {4 << 20}"],
        6: [f"s_lshl_b32 {s(s_t)}, {s(s_w)}, 11",
            f"s_add_u32 m0, {s(s_t)}, {LWO}",
            f"s_mov_b32 {s(s_t2)}, 16384",
            f"buffer_load_dwordx4 {v(vwo)}, {s(SWO,4)}, 0 offen lds",
            f"s_add_u32 m0, {s(s_t)}, {LWO + 1024}",
            "s_nop 0",
            f"buffer_load_dwordx4 {v(vwo)}, {s(SWO,4)}, {s(s_t2)} offen lds"],
    }
    A(f"s_add_u32 {s(s_slot)}, {s(s_m0w)}, 98304")
    A("s_nop 7")
    A(f"s_mov_b32 {s(s_st)}, 0")
    ST.stamp()
    if STAMPS: A("s_waitcnt lgkmcnt(0)")
    def stage(is_first):
        for i in range(8):
            j = i
            if i == 5:
                A.c("SYNC: next stage visible; refill the slot of the previous stage")
                if not is_first:
                    A(f"s_cmp_lt_u32 {s(s_st)}, 7")
                    A(f"s_cselect_b32 {s(SD+2)}, {WS_END}, 0")
                    A(f"s_cmp_eq_u32 {s(s_st)}, 5")
                    A(f"s_cselect_b32 {s(s_src)}, {s(s_alo)}, {s(s_src)}")
                    A(f"s_cmp_eq_u32 {s(s_st)}, 6")
                    A(f"s_cselect_b32 {s(s_src)}, {s(s_ahi)}, {s(s_src)}")
                A("s_waitcnt vmcnt(4)")
                A("s_barrier")
            if prio and i in prio: A(f"s_setprio {prio[i]}")
            RK = rdK(j + 3, vcur, (j + 3) * 4096) if j + 3 < 8 else rdK(j + 3, vnxt, (j + 3 - 8) * 4096)
            RV = rdV(j + 1, vcur, (j + 1) * 4096) if j + 1 < 8 else rdV(j + 1, vnxt, 0)
            extra = None
            if i == 5:
                extra = dma(f"s_mov_b32 m0, {s(s_slot)}", s_src) + [
                    f"s_add_u32 {s(s_src)}, {s(s_src)}, 32768",
                    f"s_add_u32 {s(s_slot)}, {s(s_slot)}, 32768",
                    f"s_and_b32 {s(s_slot)}, {s(s_slot)}, 0x1ffff"]
            if is_first and i in first:
                extra = first[i]
            if i == 7:
                extra = [f"v_mov_b32 {v(vcur)}, {v(vnxt)}",
                         f"v_add_u32 {v(vnxt)}, 32768, {v(vnxt)}",
                         f"v_and_b32 {v(vnxt)}, 0x1ffff, {v(vnxt)}",
                         f"s_add_u32 {s(s_st)}, {s(s_st)}, 1",
                         f"s_cmp_lt_u32 {s(s_st)}, 8"]
            for ln in iteration(j, qk(j + 1, Q[1], Cb), (pv(j - 1) if not (is_first and j == 0) else None), RK, RV, 4, extra): A(ln)
    stage(True)
    ST.stamp()
    if STAMPS: A("s_waitcnt lgkmcnt(0)")
    A(".p2align 6")
    A.label(f"L_{name}_loop")
    stage(False)
    A(f"s_cbranch_scc1 L_{name}_loop")
    A("s_waitcnt lgkmcnt(0)")
    ST.stamp()
    for ln in pv(7): A(ln)
    A.c("wo re-tile: read transposed fragments (data landed and was made visible by the loop's barriers)")
    wt = Kb[0]
    A(f"v_xor_b32 {v(t1)}, 32, {v(vwr)}")
    A(f"ds_read_b64_tr_b16 {v(wt,2)}, {v(vwr)}")
    A(f"ds_read_b64_tr_b16 {v(wt+2,2)}, {v(vwr)} offset:1024")
    A(f"ds_read_b64_tr_b16 {v(wt+4,2)}, {v(t1)}")
    A(f"ds_read_b64_tr_b16 {v(wt+6,2)}, {v(t1)} offset:1024")
    bound(0)
    epilogue(1, s_oB, "B")
    A("s_waitcnt lgkmcnt(0)")
    A(f"buffer_store_dwordx4 {v(wt,4)}, {v(vl16)}, {s(SWS,4)}, {s(s_wf)} offen {store_aux}")
    A(f"buffer_store_dwordx4 {v(wt+4,4)}, {v(vl16)}, {s(SWS,4)}, {s(s_wf)} offen offset:1024 {store_aux}")

    A.c("A-phase C blocks")
    A(f"s_sub_u32 {s(s_t)}, 8, {s(s_w)}")
    A(f"s_cmp_eq_u32 {s(s_qb)}, 0")
    A(f"s_cselect_b32 {s(s_tr)}, {s(s_t)}, 0")
    A(f"s_cselect_b64 vcc, -1, 0")
    A("s_nop 1")
    A(f"v_cndmask_b32 {v(t2)}, {v(nmb[0])}, {v(vneg)}, vcc")
    for r in range(16): A(f"v_mov_b32 {v(Cb+r)}, {v(t2)}")
    for r in range(16): A(f"v_add_f32 {v(Cm+r)}, {v(t2)}, {v(MU+r)}")
    A(f"v_add_f32 {v(t3)}, {v(vneg)}, {v(nmb[0])}")
    for r in range(16): A(f"v_sub_f32 {v(MU+r)}, {v(vneg)}, {v(MU+r)}")
    for r in range(16): A(f"v_add_f32 {v(MU+r)}, {v(nmb[0])}, {v(MU+r)}")
    for r in range(16): A(f"v_mov_b32 {v(O+r)}, 0")
    for r in range(4): A(f"v_mov_b32 {v(L+r)}, 0")
    A(f"v_add_u32 {v(vcur)}, {s(s_m0w)}, {v(vl16)}")
    A("s_waitcnt vmcnt(8)")
    A("s_barrier")
    ST.stamp()
    if STAMPS: A("s_waitcnt lgkmcnt(0)")
    N = 9
    for ln in rdK(0, vcur, 0) + rdK(1, vcur, 4096) + rdV(0, vcur, 0): A(ln)
    A("s_waitcnt lgkmcnt(4)")
    for ln in qk(0, Q[0], Cm): A(ln)
    for ln in rdK(2, vcur, 8192): A(ln)
    A("s_nop 7"); A("s_nop 1")
    prev_reads = 2
    for j in range(N):
        QKi = None
        if j + 1 < N:
            n = j + 1
            if n <= 7:
                A(f"s_cmp_eq_u32 {s(s_tr)}, {n}")
                A(f"s_cbranch_scc0 L_{name}_sk{n}")
                for r in range(16): A(f"v_mov_b32 {v(Cb+r)}, {v(nmb[0])}")
                A("s_nop 1")
                A.label(f"L_{name}_sk{n}")
            QKi = qk(n, Q[0], MU if n == 8 else Cb)
        RK = rdK(j + 3, vcur, (j + 3) * 4096) if j + 3 < N else []
        RV = rdV(j + 1, vcur, (j + 1) * 4096) if j + 1 < N else []
        PVi = pv(j - 1) if j >= 1 else None
        for ln in iteration(j, QKi, PVi, RK, RV, prev_reads): A(ln)
        prev_reads = len(RK) + len(RV)
    A("s_waitcnt lgkmcnt(0)")
    A("s_nop 1")
    for ln in pv(N - 1): A(ln)
    ST.stamp()
    epilogue(0, s_oA, "A")
    ST.flush(12, 13, s_w, t0, t1, t2)
    A.label(f"L_{name}_end")
    A("s_endpgm")

    def fallback(br, lbl):
        kv = s_kvA if br == 0 else s_kvB
        FK = Kb[1]; FV = Vb[1]
        A.label(f"L_{name}_fb{lbl}")
        A("s_waitcnt vmcnt(0) lgkmcnt(0)")
        if br == 0:
            A(f"s_max_u32 {s(s_ft)}, {s(s_i)}, 8")
            A(f"s_sub_u32 {s(s_ft)}, {s(s_ft)}, 8")
            A(f"s_add_u32 {s(s_fe)}, {s(s_i)}, 1")
        else:
            A(f"s_mov_b32 {s(s_ft)}, 0")
            A(f"s_mov_b32 {s(s_fe)}, 64")
        for ps in range(2):
            if ps == 0:
                A(f"v_mov_b32 {v(vbase)}, 0")
                A(f"v_mov_b32 {v(t3)}, {v(vneg)}")
            else:
                for r in range(16): A(f"v_mov_b32 {v(O+r)}, 0")
                for r in range(4): A(f"v_mov_b32 {v(L+r)}, 0")
            A(f"s_mov_b32 {s(s_t2)}, {s(s_ft)}")
            A.label(f"L_{name}_fb{lbl}_p{ps}")
            A(f"s_lshl_b32 {s(s_t)}, {s(s_t2)}, 12")
            A(f"s_add_u32 {s(s_t)}, {s(s_t)}, {s(kv)}")
            A(f"buffer_load_dwordx4 {v(FK,4)}, {v(vl16)}, {s(SWS,4)}, {s(s_t)} offen")
            A(f"buffer_load_dwordx4 {v(FK+4,4)}, {v(vl16)}, {s(SWS,4)}, {s(s_t)} offen offset:1024")
            if ps == 1:
                A(f"buffer_load_dwordx4 {v(FV,4)}, {v(vl16)}, {s(SWS,4)}, {s(s_t)} offen offset:2048")
                A(f"buffer_load_dwordx4 {v(FV+4,4)}, {v(vl16)}, {s(SWS,4)}, {s(s_t)} offen offset:3072")
            if br == 0:
                A(f"s_sub_u32 {s(s_t)}, {s(s_i)}, {s(s_t2)}")
                A(f"s_lshl_b32 {s(s_t)}, {s(s_t)}, 5")
                A(f"v_add_u32 {v(t2)}, {s(s_t)}, {v(vqh)}")
                mask_block(Cb, vbase, t2)
            else:
                for r in range(16): A(f"v_mov_b32 {v(Cb+r)}, {v(vbase)}")
            A("s_waitcnt vmcnt(0)")
            A("s_nop 1")
            for ln in qk(1, Q[br], Cb): A(ln)
            A("s_nop 15"); A("s_nop 3")
            if ps == 0:
                for r in range(0, 16, 2):
                    A(f"v_max3_f32 {v(t3)}, {v(t3)}, {v(S[1]+r)}, {v(S[1]+r+1)}")
            else:
                for r in range(16): A(ex(1, r))
                A("s_nop 0")
                for k in range(8): A(cv(1, k))
                A("s_nop 1")
                for ln in pv(1): A(ln)
                A("s_nop 7")
            A(f"s_add_u32 {s(s_t2)}, {s(s_t2)}, 1")
            A(f"s_cmp_lt_u32 {s(s_t2)}, {s(s_fe)}")
            A(f"s_cbranch_scc1 L_{name}_fb{lbl}_p{ps}")
            if ps == 0:
                A(f"v_mov_b32 {v(t2)}, {v(t3)}")
                A("s_nop 1")
                A(f"v_permlane32_swap_b32 {v(t2)}, {v(t3)}")
                A("s_nop 1")
                A(f"v_max_f32 {v(t2)}, {v(t2)}, {v(t3)}")
                A(f"v_sub_f32 {v(vbase)}, 0, {v(t2)}")
        A("s_nop 15"); A("s_nop 3")
        A(f"v_add_f32 {v(L)}, {v(L)}, {v(L+1)}")
        A(f"s_branch L_{name}_st{lbl}")
    fallback(0, "A")
    fallback(1, "B")
    return kernel_header(name) + A.text(), kernel_desc(name, nv), (name, 256, 512, 131072 + 16384)
```

```python
from asmlib import *
import math, struct

def f32bits(x):
    return struct.unpack("<I", struct.pack("<f", x))[0]

QSCALE = (32 ** -0.5) * math.log2(math.e)

def dpp_reduce(A, op, vr, tmp=None):
    for sh in (1, 2, 4, 8):
        A("s_nop 1")
        A(f"{op}_dpp {v(vr)}, {v(vr)}, {v(vr)} row_shr:{sh} row_mask:0xf bank_mask:0xf")
    A("s_nop 1")
    A(f"{op}_dpp {v(vr)}, {v(vr)}, {v(vr)} row_bcast:15 row_mask:0xa bank_mask:0xf")
    A("s_nop 1")
    A(f"{op}_dpp {v(vr)}, {v(vr)}, {v(vr)} row_bcast:31 row_mask:0xc bank_mask:0xf")

def gen_gemm1(name="qkv_kernel", posA=(5, 13), posB=(0, 3, 6, 14, 20), store_aux="sc1", rot=2, hoff=(0, 3, 6), touch=True, pbar=False, prio=False):
    A = Asm()
    R = RegAlloc(1)
    lane = R.alloc("lane"); t0 = R.alloc("t0"); t1 = R.alloc("t1"); t2 = R.alloc("t2"); t3 = R.alloc("t3")
    voffx = [R.alloc("voffx0"), R.alloc("voffx1")]
    voffw = R.alloc("voffw")
    adx = [R.alloc("adx0"), R.alloc("adx1")]
    adw = [R.alloc("adw0"), R.alloc("adw1")]
    vq = R.alloc("vq"); vk = R.alloc("vk"); vtch = R.alloc("vtch"); vdum = R.alloc("vdum")
    gx = R.alloc("gx", 8); gw = R.alloc("gw", 8)
    X = [[R.alloc(f"X{p}{tj}", 4) for tj in range(4)] for p in range(2)]
    W = [[R.alloc(f"W{p}{f}", 4) for f in range(6)] for p in range(2)]
    acc = [[R.alloc(f"acc{f}{tj}", 4) for tj in range(4)] for f in range(6)]
    nv = R.next
    SX, SW, SWS, SG = 16, 20, 24, 28
    s_mt, s_nt, s_br, s_hp, s_w, s_wm, s_wn = 32, 33, 34, 35, 36, 37, 38
    s_it, s_kx, s_kw, s_t, s_mx, s_mw, s_t2, s_head = 40, 41, 42, 43, 44, 45, 46, 47
    s_sc = 48
    s_q, s_kv0, s_kv1 = 50, 51, 52
    s_xd, s_xr, s_pos, s_neg = 53, 54, 55, 56
    s_xc, s_wc = 57, 58
    s_sg = [59, 60, 61]
    s_hd = [62, 63, 64]
    XSZ = 256 * 2048
    WSZ = 1024 * 6144
    LW = [98304, 98304 + 24576]
    LDS = 98304 + 2 * 24576

    A("s_cmp_ge_u32 s2, 256")
    A(f"s_cbranch_scc1 L_{name}_end")
    ST = Stamper(A, 0)
    ST.stamp()
    A("s_load_dwordx4 s[4:7], s[0:1], 0")
    A("s_load_dwordx2 s[8:9], s[0:1], 32")
    A("s_load_dwordx2 s[10:11], s[0:1], 48")
    A("s_load_dwordx2 s[12:13], s[0:1], 72")
    A(f"v_lshrrev_b32 {v(t0)}, 6, v0")
    A(f"v_and_b32 {v(lane)}, 63, v0")
    A(f"v_readfirstlane_b32 {s(s_w)}, {v(t0)}")
    A.c("decode workgroup -> (mt, nt)")
    A(f"s_and_b32 {s(s_t)}, s2, 7")
    A(f"s_lshr_b32 {s(s_t2)}, s2, 3")
    A(f"s_and_b32 {s(s_mt)}, {s(s_t)}, 1")
    A(f"s_lshl_b32 {s(s_mt)}, {s(s_mt)}, 2")
    A(f"s_and_b32 {s(s_nt)}, {s(s_t2)}, 3")
    A(f"s_add_u32 {s(s_mt)}, {s(s_mt)}, {s(s_nt)}")
    A(f"s_lshr_b32 {s(s_nt)}, {s(s_t)}, 1")
    A(f"s_lshl_b32 {s(s_nt)}, {s(s_nt)}, 3")
    A(f"s_lshr_b32 {s(s_t2)}, {s(s_t2)}, 2")
    A(f"s_add_u32 {s(s_nt)}, {s(s_nt)}, {s(s_t2)}")
    A(f"s_lshr_b32 {s(s_br)}, {s(s_nt)}, 4")
    A(f"s_and_b32 {s(s_hp)}, {s(s_nt)}, 15")
    A(f"s_and_b32 {s(s_wm)}, {s(s_w)}, 3")
    A(f"s_lshr_b32 {s(s_wn)}, {s(s_w)}, 2")
    A(f"s_lshl_b32 {s(s_head)}, {s(s_hp)}, 1")
    A(f"s_add_u32 {s(s_head)}, {s(s_head)}, {s(s_wn)}")
    A(f"s_lshl_b32 {s(s_mx)}, {s(s_w)}, 12")
    A(f"s_lshl_b32 {s(s_mw)}, {s(s_w)}, 10")
    A.c("DMA source offsets.  r = lane>>3, p = lane&7")
    A(f"v_lshrrev_b32 {v(t0)}, 3, {v(lane)}")
    A(f"v_and_b32 {v(t1)}, 7, {v(lane)}")
    A(f"v_lshrrev_b32 {v(t2)}, 1, {v(t0)}")
    A(f"v_xor_b32 {v(t3)}, {v(t1)}, {v(t2)}")
    A(f"s_lshl_b32 {s(s_t)}, {s(s_w)}, 5")
    A(f"v_add_u32 {v(voffx[0])}, {s(s_t)}, {v(t0)}")
    A(f"v_lshlrev_b32 {v(voffx[0])}, 11, {v(voffx[0])}")
    A(f"v_lshl_add_u32 {v(voffx[0])}, {v(t3)}, 4, {v(voffx[0])}")
    A(f"v_xor_b32 {v(voffx[1])}, 64, {v(voffx[0])}")
    A(f"v_and_b32 {v(t2)}, 1, {v(t2)}")
    A(f"s_and_b32 {s(s_t)}, {s(s_w)}, 1")
    A(f"s_lshl_b32 {s(s_t)}, {s(s_t)}, 1")
    A(f"v_or_b32 {v(t2)}, {s(s_t)}, {v(t2)}")
    A(f"v_lshlrev_b32 {v(t2)}, 1, {v(t2)}")
    A(f"v_xor_b32 {v(t3)}, {v(t1)}, {v(t2)}")
    A(f"s_lshl_b32 {s(s_t)}, {s(s_w)}, 3")
    A(f"v_add_u32 {v(voffw)}, {s(s_t)}, {v(t0)}")
    A(f"v_mul_u32_u24 {v(voffw)}, 6144, {v(voffw)}")
    A(f"v_lshl_add_u32 {v(voffw)}, {v(t3)}, 4, {v(voffw)}")
    A(f"s_and_b32 {s(s_t)}, s2, 7")
    A(f"s_mul_i32 {s(s_t)}, {s(s_t)}, {rot}")
    A(f"s_and_b32 {s(s_t)}, {s(s_t)}, 15")
    A(f"s_lshl_b32 {s(s_kx)}, {s(s_t)}, 7")
    A(f"s_mul_i32 {s(s_kw)}, {s(s_t)}, {64*6144}")
    A(f"s_mov_b32 {s(s_xc)}, 0")
    A(f"s_mov_b32 {s(s_wc)}, 0")
    for seg in range(3):
        A(f"s_add_u32 {s(s_t)}, {s(s_hp)}, {hoff[seg]}")
        A(f"s_and_b32 {s(s_t)}, {s(s_t)}, 15")
        A(f"s_lshl_b32 {s(s_hd[seg])}, {s(s_t)}, 1")
        A(f"s_add_u32 {s(s_hd[seg])}, {s(s_hd[seg])}, {s(s_wn)}")
        A(f"s_lshl_b32 {s(s_sg[seg])}, {s(s_t)}, 7")
        if seg: A(f"s_add_u32 {s(s_sg[seg])}, {s(s_sg[seg])}, {seg*2048}")
    A(f"s_mov_b32 {s(s_xd)}, {s(s_mx)}")
    A(f"s_mov_b32 {s(s_xr)}, 0")
    A(f"s_mov_b32 {s(s_pos)}, 32768")
    A(f"s_mov_b32 {s(s_neg)}, {hex((1 << 32) - 65536)}")
    A(f"s_lshl_b32 {s(s_t)}, {s(s_mt)}, 19")
    A(f"s_mov_b32 {s(SX+2)}, {XSZ}")
    A(f"s_mov_b32 {s(SX+3)}, 0x00020000")
    A(f"s_mov_b32 {s(SW+2)}, {WSZ}")
    A(f"s_mov_b32 {s(SW+3)}, 0x00020000")
    A("s_waitcnt lgkmcnt(0)")
    A.c("SRDs")
    A(f"s_add_u32 {s(SX)}, s4, {s(s_t)}")
    A(f"s_addc_u32 {s(SX+1)}, s5, 0")
    A(f"s_cmp_eq_u32 {s(s_br)}, 0")
    A(f"s_cselect_b32 {s(SW)}, s6, s8")
    A(f"s_cselect_b32 {s(SW+1)}, s7, s9")

    def dma_x():
        items = []
        for i in range(4):
            it = [f"s_add_u32 m0, {s(s_xd)}, {i*1024}",
                  f"s_add_u32 {s(s_t)}, {s(s_kx)}, {i*16384}",
                  f"buffer_load_dwordx4 {v(voffx[i&1])}, {s(SX,4)}, {s(s_t)} offen lds"]
            if i == 3:
                it += [f"s_add_u32 {s(s_kx)}, {s(s_kx)}, 128",
                       f"s_and_b32 {s(s_kx)}, {s(s_kx)}, 2047",
                       f"s_add_u32 {s(s_xd)}, {s(s_xd)}, 32768",
                       f"s_cmp_ge_u32 {s(s_xd)}, 98304",
                       f"s_cselect_b32 {s(s_xd)}, {s(s_mx)}, {s(s_xd)}",
                       f"s_add_u32 {s(s_xc)}, {s(s_xc)}, 1",
                       f"s_cmp_ge_u32 {s(s_xc)}, 16",
                       f"s_cselect_b32 {s(SX+2)}, 0, {XSZ}"]
            items.append(it)
        return items
    def dma_w(b, tch=True):
        items = []
        for seg in range(3):
            it = [f"s_add_u32 m0, {s(s_mw)}, {LW[b] + seg*8192}",
                  f"s_add_u32 {s(s_t)}, {s(s_kw)}, {s(s_sg[seg])}",
                  f"buffer_load_dwordx4 {v(voffw)}, {s(SW,4)}, {s(s_t)} offen lds"]
            if seg == 2:
                it += [f"s_add_u32 {s(s_kw)}, {s(s_kw)}, {64*6144}",
                       f"s_cmp_ge_u32 {s(s_kw)}, {WSZ}",
                       f"s_cselect_b32 {s(s_kw)}, 0, {s(s_kw)}",
                       f"s_add_u32 {s(s_wc)}, {s(s_wc)}, 1",
                       f"s_cmp_ge_u32 {s(s_wc)}, 16",
                       f"s_cselect_b32 {s(SW+2)}, 0, {WSZ}"]
                if touch and tch:
                    it += [f"buffer_load_dword {v(vdum)}, {v(vtch)}, {s(SW,4)}, {s(s_kw)} offen"]
            items.append(it)
        return items

    nB = len(posB) - 3
    for grp in (dma_w(0, False), dma_x()):
        for it in grp:
            for ln in it: A(ln)
    A.c("L2 touch offsets: 6 lines per wave of the next-but-one W tile (rows 16(mt&3) + 2w + {0,1}, 3 segments)")
    A(f"v_and_b32 {v(t0)}, 1, {v(lane)}")
    A(f"s_and_b32 {s(s_t)}, {s(s_mt)}, 3")
    A(f"s_lshl_b32 {s(s_t)}, {s(s_t)}, 4")
    A(f"s_lshl_b32 {s(s_t2)}, {s(s_w)}, 1")
    A(f"s_add_u32 {s(s_t)}, {s(s_t)}, {s(s_t2)}")
    A(f"v_add_u32 {v(t0)}, {s(s_t)}, {v(t0)}")
    A(f"v_mul_u32_u24 {v(vtch)}, 6144, {v(t0)}")
    A(f"v_and_b32 {v(t1)}, 6, {v(lane)}")
    A(f"v_mov_b32 {v(t2)}, {s(s_sg[0])}")
    A(f"v_mov_b32 {v(t3)}, {s(s_sg[1])}")
    A(f"v_cmp_eq_u32 vcc, 2, {v(t1)}")
    A("s_nop 1")
    A(f"v_cndmask_b32 {v(t2)}, {v(t2)}, {v(t3)}, vcc")
    A(f"v_mov_b32 {v(t3)}, {s(s_sg[2])}")
    A(f"v_cmp_eq_u32 vcc, 4, {v(t1)}")
    A("s_nop 1")
    A(f"v_cndmask_b32 {v(t2)}, {v(t2)}, {v(t3)}, vcc")
    A(f"v_add_u32 {v(vtch)}, {v(vtch)}, {v(t2)}")
    if pbar: A("s_barrier")
    for grp in (dma_x(), dma_w(1), dma_x()[:nB]):
        for it in grp:
            for ln in it: A(ln)

    A(f"s_mov_b32 {s(SWS)}, s12")
    A(f"s_mov_b32 {s(SWS+1)}, s13")
    A(f"s_mov_b32 {s(SWS+2)}, {WS_END}")
    A(f"s_mov_b32 {s(SWS+3)}, 0x00020000")
    A(f"s_mov_b32 {s(SG)}, s10")
    A(f"s_mov_b32 {s(SG+1)}, s11")
    A(f"s_mov_b32 {s(SG+2)}, 2048")
    A(f"s_mov_b32 {s(SG+3)}, 0x00020000")
    A.c("LDS read addresses.  c = lane&15, g = lane>>4")
    A(f"v_and_b32 {v(t0)}, 15, {v(lane)}")
    A(f"v_lshrrev_b32 {v(t1)}, 4, {v(lane)}")
    A(f"v_lshrrev_b32 {v(t2)}, 1, {v(t0)}")
    A(f"v_xor_b32 {v(t2)}, {v(t1)}, {v(t2)}")
    A(f"s_lshl_b32 {s(s_t)}, {s(s_wm)}, 6")
    A(f"v_add_u32 {v(adx[0])}, {s(s_t)}, {v(t0)}")
    A(f"v_lshlrev_b32 {v(adx[0])}, 7, {v(adx[0])}")
    A(f"v_lshl_add_u32 {v(adx[0])}, {v(t2)}, 4, {v(adx[0])}")
    A(f"v_xor_b32 {v(adx[1])}, 64, {v(adx[0])}")
    A(f"v_lshlrev_b32 {v(vq)}, 9, {v(t1)}")
    A(f"v_lshl_add_u32 {v(vq)}, {v(t0)}, 4, {v(vq)}")
    A(f"v_lshrrev_b32 {v(t2)}, 3, {v(t0)}")
    A(f"v_lshlrev_b32 {v(vk)}, 9, {v(t1)}")
    A(f"v_lshl_add_u32 {v(vk)}, {v(t2)}, 8, {v(vk)}")
    A(f"v_and_b32 {v(t2)}, 7, {v(t0)}")
    A(f"v_lshl_add_u32 {v(vk)}, {v(t2)}, 4, {v(vk)}")
    A(f"v_lshrrev_b32 {v(t2)}, 2, {v(t0)}")
    A(f"v_lshl_add_u32 {v(t3)}, {v(t1)}, 3, {v(t2)}")
    A(f"v_lshlrev_b32 {v(adw[0])}, 7, {v(t3)}")
    A(f"v_and_b32 {v(t3)}, 3, {v(lane)}")
    A(f"v_lshl_add_u32 {v(adw[0])}, {v(t3)}, 3, {v(adw[0])}")
    A(f"v_lshrrev_b32 {v(t2)}, 1, {v(t2)}")
    A(f"v_and_b32 {v(t3)}, 1, {v(t1)}")
    A(f"v_lshl_add_u32 {v(t2)}, {v(t3)}, 1, {v(t2)}")
    A(f"s_lshl_b32 {s(s_t)}, {s(s_wn)}, 1")
    A(f"v_xor_b32 {v(t2)}, {s(s_t)}, {v(t2)}")
    A(f"v_lshl_add_u32 {v(adw[0])}, {v(t2)}, 5, {v(adw[0])}")
    A(f"v_add_u32 {v(adw[0])}, {LW[0]}, {v(adw[0])}")
    A(f"v_xor_b32 {v(adw[1])}, 32, {v(adw[0])}")
    A.c("zero accumulators")
    for f in range(6):
        for tj in range(4):
            for r in range(4):
                A(f"v_mov_b32 {v(acc[f][tj]+r)}, 0")
    A(f"s_waitcnt vmcnt({7 + nB + int(touch)})")
    ST.stamp()
    A("s_barrier")

    def reads(p, b, sstep):
        xs = [f"ds_read_b128 {v(X[p][tj],4)}, {v(adx[sstep])} offset:{tj*2048}" for tj in range(4)]
        ws = []
        for f in range(6):
            seg, fs = f // 2, f % 2
            for half in range(2):
                off = (LW[b] - LW[0]) + seg*8192 + sstep*4096 + half*512
                ws.append(f"ds_read_b64_tr_b16 {v(W[p][f]+2*half,2)}, {v(adw[fs])} offset:{off}")
        return ws[0:2] + xs + ws[2:]

    def mfmas(p):
        out = []
        for f in range(6):
            for tj in range(4):
                if f < 4:
                    out.append(f"v_mfma_f32_16x16x32_bf16 {v(acc[f][tj],4)}, {v(W[p][f],4)}, {v(X[p][tj],4)}, {v(acc[f][tj],4)}")
                else:
                    out.append(f"v_mfma_f32_16x16x32_bf16 {v(acc[f][tj],4)}, {v(X[p][tj],4)}, {v(W[p][f],4)}, {v(acc[f][tj],4)}")
        return out

    def place(mf, rd, dm, dpos, pr=None):
        out = []; rd = list(rd); dm = list(dm)
        for i, m in enumerate(mf):
            if prio and pr and i in pr: out.append(f"s_setprio {pr[i]}")
            out.append(m)
            if i in dpos and dm:
                out += dm.pop(0)
            elif rd:
                out.append(rd.pop(0))
        assert not rd and not dm
        return out

    ST.stamp()
    for ln in reads(0, 0, 0): A(ln)
    A(f"s_mov_b32 {s(s_it)}, 0")
    A(".p2align 6")
    A.label(f"L_{name}_loop")
    for b in range(2):
        A.c(f"---- tile with W stage {b}: phase A")
        A("s_waitcnt lgkmcnt(0)")
        xd = dma_x()
        for ln in place(mfmas(0), reads(1, b, 1), xd[nB:], posA, {0: 1, 12: 0}): A(ln)
        A.c("phase B")
        A(f"s_add_u32 {s(s_xr)}, {s(s_xr)}, 1")
        A(f"s_cmp_eq_u32 {s(s_xr)}, 3")
        A(f"s_cselect_b32 {s(s_xr)}, 0, {s(s_xr)}")
        A(f"s_cselect_b32 {s(s_t2)}, {s(s_neg)}, {s(s_pos)}")
        A(f"v_add_u32 {v(adx[0])}, {s(s_t2)}, {v(adx[0])}")
        A(f"v_add_u32 {v(adx[1])}, {s(s_t2)}, {v(adx[1])}")
        A(f"s_waitcnt vmcnt({4 + int(touch)}) lgkmcnt(0)")
        A("s_barrier")
        for ln in place(mfmas(1), reads(0, b ^ 1, 0), dma_w(b) + xd[:nB], posB, {0: 3, 12: 2}): A(ln)
    A(f"s_add_u32 {s(s_it)}, {s(s_it)}, 1")
    A(f"s_cmp_lt_u32 {s(s_it)}, 8")
    A(f"s_cbranch_scc1 L_{name}_loop")

    A.c("---- epilogue")
    A("s_waitcnt lgkmcnt(0)")
    ST.stamp()
    A.c("gate loads: token = mt*256 + nt*8 + w")
    A(f"s_mov_b32 {s(SX+2)}, {XSZ}")
    A(f"s_lshl_b32 {s(s_t)}, {s(s_nt)}, 3")
    A(f"s_add_u32 {s(s_t)}, {s(s_t)}, {s(s_w)}")
    A(f"s_lshl_b32 {s(s_t2)}, {s(s_t)}, 11")
    A(f"v_lshlrev_b32 {v(t0)}, 5, {v(lane)}")
    A(f"buffer_load_dwordx4 {v(gx,4)}, {v(t0)}, {s(SX,4)}, {s(s_t2)} offen")
    A(f"buffer_load_dwordx4 {v(gx+4,4)}, {v(t0)}, {s(SX,4)}, {s(s_t2)} offen offset:16")
    A(f"buffer_load_dwordx4 {v(gw,4)}, {v(t0)}, {s(SG,4)}, 0 offen")
    A(f"buffer_load_dwordx4 {v(gw+4,4)}, {v(t0)}, {s(SG,4)}, 0 offen offset:16")
    A(f"s_mov_b32 {s(s_sc)}, {hex(f32bits(QSCALE))}")
    A(f"s_mov_b32 {s(s_sc+1)}, {hex(f32bits(QSCALE))}")
    A(f"s_lshl_b32 {s(s_t)}, {s(s_mt)}, 3")
    A(f"s_lshl_b32 {s(s_t2)}, {s(s_wm)}, 1")
    A(f"s_add_u32 {s(s_t)}, {s(s_t)}, {s(s_t2)}")
    A(f"s_lshl_b32 {s(s_t2)}, {s(s_br)}, 5")
    for seg in range(3):
        A(f"s_add_u32 {s(s_hd[seg])}, {s(s_hd[seg])}, {s(s_t2)}")
        A(f"s_lshl_b32 {s(s_sg[seg])}, {s(s_hd[seg])}, 6")
        A(f"s_add_u32 {s(s_sg[seg])}, {s(s_sg[seg])}, {s(s_t)}")
    A(f"s_lshl_b32 {s(s_q)}, {s(s_sg[0])}, 11")
    if WS_QF: A(f"s_add_u32 {s(s_q)}, {s(s_q)}, {WS_QF}")
    A(f"s_lshl_b32 {s(s_kv0)}, {s(s_sg[1])}, 12")
    A(f"s_add_u32 {s(s_kv0)}, {s(s_kv0)}, {WS_KVF}")
    A(f"s_add_u32 {s(s_kv1)}, {s(s_kv0)}, 4096")
    s_v0, s_v1 = s_xc, s_wc
    A(f"s_lshl_b32 {s(s_v0)}, {s(s_sg[2])}, 12")
    A(f"s_add_u32 {s(s_v0)}, {s(s_v0)}, {WS_KVF}")
    A(f"s_add_u32 {s(s_v1)}, {s(s_v0)}, 4096")
    P = [X[0][i] for i in range(4)] + [X[1][i] for i in range(4)] + [W[0][i] for i in range(4)]
    Gm = [W[1][i] for i in range(4)]
    for tj in range(4):
        d = P[tj]
        A(f"v_cvt_pk_bf16_f32 {v(d)}, {v(acc[2][tj])}, {v(acc[2][tj]+1)}")
        A(f"v_cvt_pk_bf16_f32 {v(d+1)}, {v(acc[2][tj]+2)}, {v(acc[2][tj]+3)}")
        A(f"v_cvt_pk_bf16_f32 {v(d+2)}, {v(acc[3][tj])}, {v(acc[3][tj]+1)}")
        A(f"v_cvt_pk_bf16_f32 {v(d+3)}, {v(acc[3][tj]+2)}, {v(acc[3][tj]+3)}")
        A(f"buffer_store_dwordx4 {v(d,4)}, {v(vk)}, {s(SWS,4)}, {s(s_kv0 if tj < 2 else s_kv1)} offen offset:{(tj%2)*128} {store_aux}")
    for tj in range(4):
        A(f"v_mfma_f32_16x16x32_bf16 {v(Gm[tj],4)}, {v(P[tj],4)}, {v(P[tj],4)}, 0")
    for u in range(2):
        for fj in range(2):
            d = P[4 + u*2 + fj]
            a0 = acc[4+fj][2*u]; a1 = acc[4+fj][2*u+1]
            A(f"v_cvt_pk_bf16_f32 {v(d)}, {v(a0)}, {v(a0+1)}")
            A(f"v_cvt_pk_bf16_f32 {v(d+1)}, {v(a0+2)}, {v(a0+3)}")
            A(f"v_cvt_pk_bf16_f32 {v(d+2)}, {v(a1)}, {v(a1+1)}")
            A(f"v_cvt_pk_bf16_f32 {v(d+3)}, {v(a1+2)}, {v(a1+3)}")
            A(f"buffer_store_dwordx4 {v(d,4)}, {v(vq)}, {s(SWS,4)}, {s(s_v0 if u == 0 else s_v1)} offen offset:{2048 + fj*256} {store_aux}")
    for tj in range(4):
        d = P[8 + tj]
        for f in range(2):
            for h in range(2):
                r = acc[f][tj] + 2*h
                A(f"v_pk_mul_f32 {v(r,2)}, {v(r,2)}, {s(s_sc,2)}")
        A(f"v_cvt_pk_bf16_f32 {v(d)}, {v(acc[0][tj])}, {v(acc[0][tj]+1)}")
        A(f"v_cvt_pk_bf16_f32 {v(d+1)}, {v(acc[0][tj]+2)}, {v(acc[0][tj]+3)}")
        A(f"v_cvt_pk_bf16_f32 {v(d+2)}, {v(acc[1][tj])}, {v(acc[1][tj]+1)}")
        A(f"v_cvt_pk_bf16_f32 {v(d+3)}, {v(acc[1][tj]+2)}, {v(acc[1][tj]+3)}")
        A(f"buffer_store_dwordx4 {v(d,4)}, {v(vq)}, {s(SWS,4)}, {s(s_q)} offen offset:{(tj//2)*2048 + (tj%2)*256} {store_aux}")
    allg = [Gm[i] + r for i in range(4) for r in range(4)]
    A(f"v_max3_f32 {v(t0)}, {v(allg[0])}, {v(allg[1])}, {v(allg[2])}")
    for i in range(3, 15, 2):
        A(f"v_max3_f32 {v(t0)}, {v(t0)}, {v(allg[i])}, {v(allg[i+1])}")
    A(f"v_max_f32 {v(t0)}, {v(t0)}, {v(allg[15])}")
    dpp_reduce(A, "v_max_f32", t0)
    A(f"s_lshl_b32 {s(s_t2)}, {s(s_hd[1])}, 5")
    A(f"s_lshl_b32 {s(s_t)}, {s(s_mt)}, 2")
    A(f"s_add_u32 {s(s_t2)}, {s(s_t2)}, {s(s_t)}")
    A(f"s_add_u32 {s(s_t2)}, {s(s_t2)}, {s(s_wm)}")
    A(f"s_lshl_b32 {s(s_t2)}, {s(s_t2)}, 2")
    A(f"s_add_u32 {s(s_q)}, {s(s_t2)}, {WS_KN}")
    A.c("gate compute")
    A("s_waitcnt vmcnt(12)")
    tA = acc[0][0]; tB = acc[0][1]; tP = acc[0][2]; gs = acc[0][3]
    A(f"v_mov_b32 {v(gs)}, 0")
    for i in range(8):
        A(f"v_lshlrev_b32 {v(tA)}, 16, {v(gx+i)}")
        A(f"v_and_b32 {v(tA+1)}, 0xffff0000, {v(gx+i)}")
        A(f"v_lshlrev_b32 {v(tB)}, 16, {v(gw+i)}")
        A(f"v_and_b32 {v(tB+1)}, 0xffff0000, {v(gw+i)}")
        A(f"v_mul_f32 {v(tA)}, {v(tA)}, {v(tB)}")
        A(f"v_mul_f32 {v(tA+1)}, {v(tA+1)}, {v(tB+1)}")
        A(f"v_cvt_pk_bf16_f32 {v(tP)}, {v(tA)}, {v(tA+1)}")
        A(f"v_lshlrev_b32 {v(tA)}, 16, {v(tP)}")
        A(f"v_and_b32 {v(tA+1)}, 0xffff0000, {v(tP)}")
        A(f"v_add_f32 {v(gs)}, {v(gs)}, {v(tA)}")
        A(f"v_add_f32 {v(gs)}, {v(gs)}, {v(tA+1)}")
    dpp_reduce(A, "v_add_f32", gs)
    A(f"v_cvt_pk_bf16_f32 {v(tP)}, {v(gs)}, {v(gs)}")
    A(f"v_lshlrev_b32 {v(tA)}, 16, {v(tP)}")
    A(f"v_mul_f32 {v(tA)}, {hex(f32bits(-math.log2(math.e)))}, {v(tA)}")
    A(f"v_exp_f32 {v(tA)}, {v(tA)}")
    A("s_nop 0")
    A(f"v_add_f32 {v(tA)}, 1.0, {v(tA)}")
    A(f"v_rcp_f32 {v(tA)}, {v(tA)}")
    A("s_nop 0")
    A(f"v_cvt_pk_bf16_f32 {v(tP)}, {v(tA)}, {v(tA)}")
    A(f"v_lshlrev_b32 {v(tA)}, 16, {v(tP)}")
    A(f"v_sub_f32 {v(tB)}, 1.0, {v(tA)}")
    A(f"v_cvt_pk_bf16_f32 {v(tP)}, {v(tB)}, {v(tB)}")
    A(f"v_lshlrev_b32 {v(tB)}, 16, {v(tP)}")
    A(f"s_lshl_b32 {s(s_t)}, {s(s_mt)}, 8")
    A(f"s_lshl_b32 {s(s_t2)}, {s(s_nt)}, 3")
    A(f"s_add_u32 {s(s_t)}, {s(s_t)}, {s(s_t2)}")
    A(f"s_add_u32 {s(s_t)}, {s(s_t)}, {s(s_w)}")
    A(f"s_lshl_b32 {s(s_t)}, {s(s_t)}, 2")
    A(f"s_add_u32 {s(s_t)}, {s(s_t)}, {WS_G}")
    A(f"s_add_u32 {s(s_t2)}, {s(s_t)}, 8192")
    A(f"v_mov_b32 {v(t1)}, 0")
    A("s_mov_b32 exec_lo, 0")
    A("s_mov_b32 exec_hi, 0x80000000")
    A(f"buffer_store_dword {v(t0)}, {v(t1)}, {s(SWS,4)}, {s(s_q)} offen")
    A(f"buffer_store_dword {v(tA)}, {v(t1)}, {s(SWS,4)}, {s(s_t)} offen")
    A(f"buffer_store_dword {v(tB)}, {v(t1)}, {s(SWS,4)}, {s(s_t2)} offen")
    ST.stamp()
    ST.flush(12, 13, s_w, t0, t1, t2)
    A.label(f"L_{name}_end")
    A("s_endpgm")
    return kernel_header(name) + A.text(), kernel_desc(name, nv), (name, 256, 512, LDS)
```

```python
from asmlib import *

class VmTrack:
    def __init__(self): self.ops = []
    def issue(self, tag): self.ops.append(tag)
    def wait_for(self, tags):
        idx = [i for i, t in enumerate(self.ops) if t in tags]
        for t in tags: assert t in self.ops, t
        n = len(self.ops) - 1 - max(idx)
        assert n <= 63
        return n

def gen_gemm3(name="oproj_kernel", ORING=8, RATE=4, INIT_O=2):
    A = Asm()
    R = RegAlloc(1)
    lane = R.alloc("lane"); t0 = R.alloc("t0"); t1 = R.alloc("t1"); t2 = R.alloc("t2"); t3 = R.alloc("t3")
    vl16 = R.alloc("vl16"); vo = [R.alloc("vo0"), R.alloc("vo1")]
    adw = [R.alloc("adw0"), R.alloc("adw1")]
    vst = R.alloc("vst"); vx = R.alloc("vx"); vy = R.alloc("vy")
    NW = 3
    Wf = [[R.alloc(f"W{p}{f}", 4) for f in range(4)] for p in range(NW)]
    Ob = [[R.alloc(f"O{k}{x}", 4) for x in range(2)] for k in range(ORING)]
    acc = [[R.alloc(f"acc{f}{x}", 4) for x in range(2)] for f in range(4)]
    nv = R.next
    SWS, SO = 16, 24
    s_mt, s_nt, s_w, s_wm, s_kh, s_t, s_t2, s_ob, s_m0, s_t32, s_wb = 32, 33, 34, 35, 36, 37, 38, 39, 40, 41, 42
    VM = VmTrack()

    A("s_cmp_ge_u32 s2, 256")
    A(f"s_cbranch_scc1 L_{name}_end")
    ST = Stamper(A, 2)
    ST.stamp()
    A("s_load_dwordx2 s[8:9], s[0:1], 56")
    A("s_load_dwordx2 s[12:13], s[0:1], 72")
    A(f"v_lshrrev_b32 {v(t0)}, 6, v0")
    A(f"v_and_b32 {v(lane)}, 63, v0")
    A(f"v_readfirstlane_b32 {s(s_w)}, {v(t0)}")
    A(f"s_and_b32 {s(s_t)}, s2, 7")
    A(f"s_lshr_b32 {s(s_t2)}, s2, 3")
    A(f"s_and_b32 {s(s_mt)}, {s(s_t)}, 3")
    A(f"s_lshl_b32 {s(s_mt)}, {s(s_mt)}, 2")
    A(f"s_and_b32 {s(s_nt)}, {s(s_t2)}, 3")
    A(f"s_add_u32 {s(s_mt)}, {s(s_mt)}, {s(s_nt)}")
    A(f"s_lshr_b32 {s(s_nt)}, {s(s_t)}, 2")
    A(f"s_lshl_b32 {s(s_nt)}, {s(s_nt)}, 3")
    A(f"s_lshr_b32 {s(s_t2)}, {s(s_t2)}, 2")
    A(f"s_add_u32 {s(s_nt)}, {s(s_nt)}, {s(s_t2)}")
    A(f"s_and_b32 {s(s_wm)}, {s(s_w)}, 3")
    A(f"s_lshr_b32 {s(s_kh)}, {s(s_w)}, 2")
    A(f"s_lshl_b32 {s(s_t32)}, {s(s_mt)}, 2")
    A(f"s_add_u32 {s(s_t32)}, {s(s_t32)}, {s(s_wm)}")
    A(f"s_lshl_b32 {s(s_ob)}, {s(s_t32)}, 11")
    A(f"s_lshl_b32 {s(s_t)}, {s(s_kh)}, 22")
    A(f"s_add_u32 {s(s_ob)}, {s(s_ob)}, {s(s_t)}")
    A(f"s_add_u32 {s(s_ob)}, {s(s_ob)}, {WS_OF}")
    A(f"s_lshl_b32 {s(s_wb)}, {s(s_kh)}, 21")
    A(f"s_lshl_b32 {s(s_t)}, {s(s_nt)}, 17")
    A(f"s_add_u32 {s(s_wb)}, {s(s_wb)}, {s(s_t)}")
    A(f"s_lshl_b32 {s(s_t)}, {s(s_wm)}, 12")
    A(f"s_add_u32 {s(s_wb)}, {s(s_wb)}, {s(s_t)}")
    A(f"s_add_u32 {s(s_wb)}, {s(s_wb)}, {WS_WF}")
    A(f"s_lshl_b32 {s(s_m0)}, {s(s_w)}, 12")
    A(f"s_lshl_b32 {s(s_t)}, {s(s_kh)}, 10")
    A(f"v_lshlrev_b32 {v(vl16)}, 4, {v(lane)}")
    A(f"v_add_u32 {v(vo[0])}, {s(s_t)}, {v(vl16)}")
    A(f"v_xor_b32 {v(vo[1])}, 1024, {v(vo[0])}")
    A(f"s_mov_b32 {s(SWS+2)}, {WS_END}")
    A(f"s_mov_b32 {s(SWS+3)}, 0x00020000")
    A("s_waitcnt lgkmcnt(0)")
    A(f"s_mov_b32 {s(SWS)}, s12")
    A(f"s_mov_b32 {s(SWS+1)}, s13")

    def dma(st):
        items = []
        for i in range(4):
            items.append((("D", st), [f"s_add_u32 m0, {s(s_m0)}, {(st % 4)*32768}",
                          f"s_add_u32 {s(s_t)}, {s(s_wb)}, {st*16384}",
                          f"buffer_load_dwordx4 {v(vl16)}, {s(SWS,4)}, {s(s_t)} offen offset:{i*1024} lds"]))
        return items
    def oload(n):
        items = []
        for x in range(2):
            items.append((("O", n), [f"s_add_u32 {s(s_t2)}, {s(s_ob)}, {n*131072}",
                          f"buffer_load_dwordx4 {v(Ob[n % ORING][x],4)}, {v(vo[x])}, {s(SWS,4)}, {s(s_t2)} offen"]))
        return items
    def emit_item(it):
        tag, lns = it
        for ln in lns: A(ln)
        VM.issue(tag)

    Q = []
    for st in range(8):
        need = 4*st - 2.5
        earliest = -1 if st < 4 else 4*(st-4) + 2
        for it in dma(st): Q.append((need, earliest, it))
    for n in range(32):
        earliest = -1 if n < ORING else n - ORING + 1
        for it in oload(n): Q.append((n, earliest, it))
    Q.sort(key=lambda x: x[0])
    def take(k, cnt):
        out = []
        i = 0
        while i < len(Q) and len(out) < cnt:
            if Q[i][1] <= k: out.append(Q.pop(i)[2])
            else: i += 1
        return out

    for it in take(-1, 4 + 2*INIT_O): emit_item(it)

    A(f"s_mov_b32 {s(SO)}, s8")
    A(f"s_mov_b32 {s(SO+1)}, s9")
    A(f"s_mov_b32 {s(SO+2)}, {2048*2048}")
    A(f"s_mov_b32 {s(SO+3)}, 0x00020000")
    A(f"s_lshl_b32 {s(s_t)}, {s(s_kh)}, 14")
    A(f"v_add_u32 {v(adw[0])}, {s(s_t)}, {v(vl16)}")
    A(f"v_add_u32 {v(adw[1])}, 65536, {v(adw[0])}")
    A(f"v_add_u32 {v(vx)}, {s(s_m0)}, {v(vl16)}")
    A(f"v_xor_b32 {v(vy)}, 16384, {v(vx)}")
    A(f"v_lshrrev_b32 {v(t0)}, 4, {v(lane)}")
    A(f"v_and_b32 {v(t3)}, 1, {v(t0)}")
    A(f"s_lshl_b32 {s(s_t)}, {s(s_t32)}, 5")
    A(f"s_lshl_b32 {s(s_t2)}, {s(s_kh)}, 4")
    A(f"s_add_u32 {s(s_t)}, {s(s_t)}, {s(s_t2)}")
    A(f"v_and_b32 {v(t2)}, 15, {v(lane)}")
    A(f"v_add_u32 {v(vst)}, {s(s_t)}, {v(t2)}")
    A(f"v_lshlrev_b32 {v(vst)}, 11, {v(vst)}")
    A(f"v_lshl_add_u32 {v(vst)}, {v(t3)}, 5, {v(vst)}")
    A(f"v_lshrrev_b32 {v(t2)}, 1, {v(t0)}")
    A(f"v_lshl_add_u32 {v(vst)}, {v(t2)}, 4, {v(vst)}")
    A(f"s_lshl_b32 {s(s_t)}, {s(s_nt)}, 7")
    A(f"v_add_u32 {v(vst)}, {s(s_t)}, {v(vst)}")
    for f in range(4):
        for x in range(2):
            for r in range(4): A(f"v_mov_b32 {v(acc[f][x]+r)}, 0")
    for it in take(-1, RATE): emit_item(it)

    def reads(n):
        st, k = n // 4, n % 4
        slot = st % 4
        return [f"ds_read_b128 {v(Wf[n%NW][f],4)}, {v(adw[slot//2])} offset:{(slot % 2)*32768 + k*4096 + f*1024}" for f in range(4)]
    def mfmas(n):
        return [f"v_mfma_f32_16x16x32_bf16 {v(acc[f][x],4)}, {v(Wf[n%NW][f],4)}, {v(Ob[n%ORING][x],4)}, {v(acc[f][x],4)}"
                for f in range(4) for x in range(2)]

    A(f"s_waitcnt vmcnt({VM.wait_for([('D', 0)])})")
    A("s_barrier")
    ST.stamp()
    if STAMPS: A("s_waitcnt lgkmcnt(0)")
    for ln in reads(0) + reads(1): A(ln)
    for n in range(32):
        A.c(f"k-step {n}")
        need = [("O", n)]
        sync = (n % 4 == 2 and n + 2 < 32)
        if sync:
            st1 = (n + 2) // 4
            while ("D", st1) not in VM.ops or sum(1 for t in VM.ops if t == ("D", st1)) < 4:
                emit_item(take(n - 1, 1)[0])
            need.append(("D", st1))
        while sum(1 for t in VM.ops if t == ("O", n)) < 2:
            emit_item(take(n - 1, 1)[0])
        lg = 0 if (sync or n + 1 >= 32) else 4
        A(f"s_waitcnt vmcnt({VM.wait_for(need)}) lgkmcnt({lg})")
        if sync: A("s_barrier")
        items = take(n, RATE)
        sec = (reads(n + 2) if n + 2 < 32 else [])
        mf = mfmas(n)
        for i, m in enumerate(mf):
            A(m)
            if i < len(sec): A(sec[i])
            if items and i >= 1: emit_item(items.pop(0))
        for it in items: emit_item(it)
    assert not Q
    ST.stamp()
    A.c("exchange")
    A("s_nop 7")
    for f in range(4):
        A(f"ds_write_b128 {v(vx)}, {v(acc[f][1],4)} offset:{f*1024}")
    A("s_waitcnt lgkmcnt(0)")
    A("s_barrier")
    rv = [Wf[0][f] for f in range(4)]
    for f in range(4):
        A(f"ds_read_b128 {v(rv[f],4)}, {v(vy)} offset:{f*1024}")
    pk = [Wf[1][0], Wf[1][1]]
    for pr in range(2):
        d = pk[pr]
        for ff in range(2):
            f = 2*pr + ff
            A(f"s_waitcnt lgkmcnt({3 - f})")
            for r in range(4):
                A(f"v_add_f32 {v(acc[f][0]+r)}, {v(acc[f][0]+r)}, {v(rv[f]+r)}")
            A(f"v_cvt_pk_bf16_f32 {v(d+2*ff)}, {v(acc[f][0])}, {v(acc[f][0]+1)}")
            A(f"v_cvt_pk_bf16_f32 {v(d+2*ff+1)}, {v(acc[f][0]+2)}, {v(acc[f][0]+3)}")
        A("s_nop 1")
        A(f"v_permlane16_swap_b32 {v(d)}, {v(d+2)}")
        A(f"v_permlane16_swap_b32 {v(d+1)}, {v(d+3)}")
        A("s_nop 1")
        A(f"buffer_store_dwordx4 {v(d,4)}, {v(vst)}, {s(SO,4)}, 0 offen offset:{pr*64}")
    ST.flush(12, 13, s_w, t0, t1, t2)
    A.label(f"L_{name}_end")
    A("s_endpgm")
    return kernel_header(name) + A.text(), kernel_desc(name, nv), (name, 256, 512, 131072)
```

```python
import sys, importlib
from asmlib import *
import gemm1
OUT = "gated_mix__sliding_block__mha_block__prompt.s"
HEAD = open("gated_mix__sliding_block__mha_block__prompt.s.ref").read().split("; Override launch")[0]

def build(kernels, out=OUT):
    txt = HEAD
    for code, desc, (name, grid, block, lds) in kernels:
        txt += f"; @launch kernel={name} grid=({grid},1,1) block=({block},1,1) lds={lds}\n"
    txt += '.amdgcn_target "amdgcn-amd-amdhsa--gfx950"\n.text\n'
    for code, desc, _ in kernels:
        txt += code
    txt += '.section .rodata,"a"\n'
    for code, desc, _ in kernels:
        txt += desc
    open(out, "w").write(txt)

if __name__ == "__main__":
    import attn, gemm3
    kw = {"g1": {}, "at": {}, "g3": {}}
    for a in sys.argv[2:]:
        k, rest = a.split(".", 1); n, val = rest.split("=", 1)
        kw[k][n] = eval(val)
    ks = [gemm1.gen_gemm1(**kw["g1"]), attn.gen_attn(**kw["at"]), gemm3.gen_gemm3(**kw["g3"])]
    build(ks, sys.argv[1] if len(sys.argv) > 1 else OUT)
```
